```python
import torch

def _softmax(x, axis=-1):
    return torch.softmax(x, dim=axis)
def _gelu(x):
    return torch.nn.functional.gelu(x, approximate="tanh")
def _silu(x):
    return torch.nn.functional.silu(x)
def _sigmoid(x):
    return torch.sigmoid(x)
def _layernorm(x, axis=-1, eps=1e-5):
    m = x.mean(dim=axis, keepdim=True)
    v = x.var(dim=axis, keepdim=True, unbiased=False)
    return (x - m) / torch.sqrt(v + eps)
def _scatter_add(tgt, idx, src, axis=0):
    return tgt.clone().index_add_(axis, idx, src)
def _segment_sum(src, seg, n):
    out = torch.zeros((n,) + src.shape[1:], dtype=src.dtype)
    return out.index_add_(0, seg, src)
def _pad(x, pw):
    flat = tuple(v for pair in reversed(pw) for v in pair)
    return torch.nn.functional.pad(x, flat)

kernel_name = 'recurrent_scan__ssm_conv_s4__glu_gated_glu__prompt'

def setup_inputs():

    _w = (lambda a: (lambda t: t.to(torch.bfloat16) if t.is_floating_point() else t)(torch.as_tensor(a)))
    def _A_setup():
        B, L, D, N = 1, 2048, 448, 256
        A_re = -(lambda _x: torch.exp(torch.as_tensor(_x)))((lambda *s: torch.randn(*s, dtype=torch.bfloat16) * 6.4)(D, N))
        A_im = torch.pi * (lambda *s: torch.randn(*s, dtype=torch.bfloat16) * 0.05)(D, N)
        B_re = (lambda *s: torch.randn(*s, dtype=torch.bfloat16) * 0.05)(D, N)
        B_im = (lambda *s: torch.randn(*s, dtype=torch.bfloat16) * 0.05)(D, N)
        C_re = (lambda *s: torch.randn(*s, dtype=torch.bfloat16) * 0.05)(D, N)
        C_im = (lambda *s: torch.randn(*s, dtype=torch.bfloat16) * 0.05)(D, N)
        log_dt = (lambda *s: torch.randn(*s, dtype=torch.bfloat16) * 0.05)(D) * 0.5 - 4.0
        Dskip = (lambda *s: torch.randn(*s, dtype=torch.bfloat16) * 0.05)(D)
        return {
            "u": _w((lambda *s: torch.randn(*s, dtype=torch.bfloat16) * 0.05)(B, L, D)),
            "A_re": _w(A_re),
            "A_im": _w(A_im),
            "B_re": _w(B_re),
            "B_im": _w(B_im),
            "C_re": _w(C_re),
            "C_im": _w(C_im),
            "log_dt": _w(log_dt),
            "Dskip": _w(Dskip),
        }
    _A_in = _A_setup()

    def _B_setup():
        B, S, D, F = 1, 2048, 448, 1792
        return {
            "x": _w((lambda *s: torch.randn(*s, dtype=torch.bfloat16) * 0.05)(B, S, D)),
            "w_gate": _w((lambda *s: torch.randn(*s, dtype=torch.bfloat16) * 0.05)(D, F)),
            "w_up": _w((lambda *s: torch.randn(*s, dtype=torch.bfloat16) * 0.05)(D, F)),
            "w_down": _w((lambda *s: torch.randn(*s, dtype=torch.bfloat16) * 0.05)(F, D)),
        }
    _B_in = _B_setup()

    return {
        "A_u": _A_in["u"],
        "A_A_re": _A_in["A_re"],
        "A_A_im": _A_in["A_im"],
        "A_B_re": _A_in["B_re"],
        "A_B_im": _A_in["B_im"],
        "A_C_re": _A_in["C_re"],
        "A_C_im": _A_in["C_im"],
        "A_log_dt": _A_in["log_dt"],
        "A_Dskip": _A_in["Dskip"],
        "B_x": _B_in["x"],
        "B_w_gate": _B_in["w_gate"],
        "B_w_up": _B_in["w_up"],
        "B_w_down": _B_in["w_down"],
    }

def reference(A_u, A_A_re, A_A_im, A_B_re, A_B_im, A_C_re, A_C_im, A_log_dt, A_Dskip, B_x, B_w_gate, B_w_up, B_w_down):
    def _A_ref(u, A_re, A_im, B_re, B_im, C_re, C_im, log_dt, Dskip):
        Bsz, L, D = u.shape
        dt = torch.exp(log_dt)[:, None]
        A = A_re + 1j * A_im
        Bc = B_re + 1j * B_im
        Cc = C_re + 1j * C_im
        logdA = dt * A
        dB = dt * Bc
        l = (lambda x, dt: x.to(dt))(torch.arange(L), A_re.dtype)
        P = torch.exp(logdA[:, :, None] * l[None, None, :])
        K = torch.einsum("dn,dnl,dn->dl", Cc, P, dB).real
        L2 = 2 * L
        Kp = _pad(K, ((0, 0), (0, L)))
        up = (lambda x, *d: x.permute(*d))(u, 0, 2, 1)
        up = _pad(up, ((0, 0), (0, 0), (0, L)))
        Kf = (lambda x, axes=(-2,-1): torch.fft.rfft2(x.float(), dim=axes))(Kp[:, None, :], axes=(-2, -1))
        Uf = (lambda x, axes=(-2,-1): torch.fft.rfft2(x.float(), dim=axes))(up[:, :, None, :], axes=(-2, -1))
        Yf = Uf * Kf[None, :, :, :]
        y = (lambda x, s, axes=(-2,-1): torch.fft.irfft2(x, s=s, dim=axes).to(torch.bfloat16))(Yf, (1, L2), axes=(-2, -1))[:, :, 0, :L]
        y = (lambda x, *d: x.permute(*d))(y, 0, 2, 1) + u * Dskip[None, None, :]
        return y

    def _B_ref(x, w_gate, w_up, w_down):
        g = torch.einsum("bsd,df->bsf", x, w_gate)
        u = torch.einsum("bsd,df->bsf", x, w_up)
        h = _sigmoid(g) * u
        return torch.einsum("bsf,fd->bsd", h, w_down)

    x = A_u
    xn = _layernorm(x, axis=-1)
    s = _A_ref(xn, A_A_re, A_A_im, A_B_re, A_B_im, A_C_re, A_C_im, A_log_dt, A_Dskip)
    g = _silu(_B_ref(xn, B_w_gate, B_w_up, B_w_down))
    return x + s * g
```

```python
NAME = 'recurrent_scan__ssm_conv_s4__glu_gated_glu__prompt'
class Asm:
    def __init__(s):
        s.lines = []; s.kernels = []; s.launches = []; s.lab = 0
    def __call__(s, txt):
        for l in txt.split('\n'):
            l = l.strip()
            if l: s.lines.append(('' if l.endswith(':') else '  ') + l)
    def label(s, base='L'):
        s.lab += 1; return f'{base}_{s.lab}'
    def begin(s, name):
        s.lines += ['.text', f'.globl {name}', '.p2align 8', f'.type {name},@function', f'{name}:']
    def end(s, name, vgpr, sgpr=96, accum=None, extra=''):
        if accum is None: accum = (vgpr + 3) // 4 * 4
        s.kernels.append(f'''.section .rodata,"a"
.p2align 6
.amdhsa_kernel {name}
  .amdhsa_next_free_vgpr {vgpr}
  .amdhsa_next_free_sgpr {sgpr}
  .amdhsa_accum_offset {accum}
  .amdhsa_group_segment_fixed_size 0
  .amdhsa_kernarg_size 128
  .amdhsa_user_sgpr_count 2
  .amdhsa_user_sgpr_kernarg_segment_ptr 1
  .amdhsa_system_sgpr_workgroup_id_x 1
{extra}.end_amdhsa_kernel''')
    def launch(s, name, grid, block, lds):
        s.launches.append(f'; @launch kernel={name} grid=({grid},1,1) block=({block},1,1) lds={lds}')
    def text(s):
        return '\n'.join(s.launches + ['.amdgcn_target "amdgcn-amd-amdhsa--gfx950"'] + s.lines + s.kernels) + '\n'
    def srd(s, d, base, nbytes):
        s(f's_mov_b32 s{d}, s{base}\ns_and_b32 s{d+1}, s{base+1}, 0xffff\ns_mov_b32 s{d+2}, {nbytes}\ns_mov_b32 s{d+3}, 0x20000')
def vr(a, n=1): return f'v{a}' if n == 1 else f'v[{a}:{a+n-1}]'
def sr(a, n=1): return f's{a}' if n == 1 else f's[{a}:{a+n-1}]'
def ar(a, n=1): return f'a{a}' if n == 1 else f'a[{a}:{a+n-1}]'
```

```python
import re
TRANS = re.compile(r'v_(exp|log|rcp|rsq|sqrt|sin|cos)_')
def regs(tok):
    tok = tok.strip()
    tok = re.sub(r'^-', '', tok); tok = re.sub(r'^abs\((.*)\)$', r'\1', tok); tok = tok.strip('|')
    m = re.fullmatch(r'([vas])(\d+)', tok)
    if m: return {(m.group(1), int(m.group(2)))}
    m = re.fullmatch(r'([vas])\[(\d+):(\d+)\]', tok)
    if m: return {(m.group(1), i) for i in range(int(m.group(2)), int(m.group(3)) + 1)}
    if tok == 'vcc': return {('s', 'vcc')}
    if tok == 'exec': return {('s', 'exec')}
    if tok == 'm0': return {('s', 'm0')}
    return set()
class I:
    def __init__(s, line):
        s.line = line; t = line.split(';')[0].strip()
        s.op = t.split()[0] if t else ''
        rest = t[len(s.op):]
        ops = [x.strip() for x in re.split(r',(?![^\[]*\])', rest)] if rest.strip() else []
        if ops:
            last = ops[-1].split(); ops[-1] = last[0] if last else ''; s.mods = ' '.join(last[1:])
        else: s.mods = ''
        s.ops = ops; op = s.op
        s.mfma = op.startswith('v_mfma'); s.valu = op.startswith('v_') and not s.mfma
        s.vmem = op.startswith(('buffer_', 'global_', 'flat_')); s.ds = op.startswith('ds_')
        s.salu = op.startswith('s_'); s.trans = bool(TRANS.match(op))
        s.dpp = '_dpp' in op; s.sdwa = '_sdwa' in op
        s.w = set(); s.r = set(); s.srcc = set(); s.ab = set(); s.sdata = set()
        R = [regs(o) for o in ops]
        if s.mfma:
            s.w = R[0]; s.ab = R[1] | R[2]; s.srcc = R[3]; s.r = s.ab | s.srcc
            s.passes = 8 if '32x32' in op else 4
        elif s.valu:
            if op.startswith('v_cmp'):
                s.w = R[0] | ({('s', 'exec')} if 'cmpx' in op else set()); s.r = set().union(*R[1:])
            elif op.startswith(('v_permlane16_swap', 'v_permlane32_swap', 'v_swap')):
                s.w = R[0] | R[1]; s.r = R[0] | R[1]
            elif '_co_' in op or op.startswith(('v_div_scale', 'v_mad_u64')):
                s.w = R[0] | R[1]; s.r = set().union(*R[2:])
            elif op == 'v_nop': pass
            else:
                s.w = R[0]; s.r = set().union(*R[1:]) if len(R) > 1 else set()
                if op.startswith(('v_fmac', 'v_dot2c', 'v_pk_fmac', 'v_writelane')) or s.dpp or s.sdwa: s.r |= R[0]
        elif s.vmem:
            lds = ' lds' in (' ' + s.mods)
            if 'load' in op and not lds: s.w = R[0]; s.r = set().union(*R[1:])
            elif lds: s.r = set().union(*R) | {('s', 'm0')}
            else:
                s.r = set().union(*R)
                d = R[0] if op.startswith('buffer') else R[1]
                if 'x4' in op or 'x3' in op: s.sdata = d
                if 'atomic' in op and 'sc0' in s.mods: s.w = R[0]
            s.lds = lds
        elif s.ds:
            if op.startswith(('ds_read', 'ds_bpermute', 'ds_permute', 'ds_swizzle')) or '_rtn' in op:
                s.w = R[0]; s.r = set().union(*R[1:])
            else: s.r = set().union(*R)
        elif s.salu:
            if op.startswith(('s_cmp', 's_cbranch', 's_branch', 's_waitcnt', 's_nop', 's_barrier', 's_endpgm', 's_sleep', 's_setprio', 's_bitcmp')):
                s.r = set().union(*R) if R else set()
            else:
                s.w = R[0] if R else set(); s.r = set().union(*R[1:]) if len(R) > 1 else set()
                if 'saveexec' in op: s.w = s.w | {('s', 'exec')}
    def states(s):
        return int(s.ops[0], 0) + 1 if s.op == 's_nop' else 1
def need(p, c):
    n = 0
    vw = {x for x in p.w if x[0] != 's'}; sw = {x for x in p.w if x[0] == 's'}
    if p.valu:
        if c.mfma and vw & c.r: n = max(n, 2)
        if c.valu and c.dpp and vw & c.r: n = max(n, 2)
        if c.op.startswith('v_permlane') and vw & c.r: n = max(n, 2)
        if c.op.startswith(('v_readlane', 'v_readfirstlane')) and vw & c.r: n = max(n, 1)
        if p.trans and (c.valu) and vw & c.r: n = max(n, 1)
        if (p.sdwa or 'op_sel' in p.mods and not p.op.startswith('v_pk')) and c.valu and vw & (c.r | c.w): n = max(n, 1)
        if c.vmem and sw & c.r: n = max(n, 5)
        if c.valu and sw & c.r: n = max(n, 4 if c.op.startswith(('v_readlane', 'v_writelane', 'v_div_fmas')) else 2)
        if c.valu and c.op.startswith(('v_cndmask', 'v_addc', 'v_subb')) and ('s', 'vcc') in sw: n = max(n, 2)
        if ('s', 'exec') in sw:
            if c.mfma or c.op.startswith(('v_readlane', 'v_readfirstlane', 'v_writelane', 'v_permlane')): n = max(n, 4)
            if c.dpp: n = max(n, 5)
        if p.op.startswith('v_dot') and (c.valu or c.mfma or c.vmem or c.ds) and vw & (c.r | c.w):
            if not (c.op == p.op and not (vw & set().union(*[regs(o) for o in c.ops[1:3]]))): n = max(n, 3)
    if p.mfma:
        k = p.passes
        if c.mfma:
            if p.w & c.ab: n = max(n, k + 4)
            if p.w & c.srcc and not (p.w == c.srcc and c.passes == k): n = max(n, k + 2)
            if p.w & c.w and not (p.w == c.w and c.passes == k): n = max(n, k + 2)
        elif (c.valu or c.vmem or c.ds) and p.w & (c.r | c.w): n = max(n, k + 4)
        if c.valu and p.srcc & c.w: n = max(n, k - 1)
    if p.salu and ('s', 'm0') in p.w and c.vmem and getattr(c, 'lds', False): n = max(n, 1)
    if p.salu and ('s', 'm0') in p.w and 'addtid' in c.op: n = max(n, 1)
    if p.vmem and p.sdata and p.sdata & c.w: n = max(n, 2)
    if p.ds and p.op in ('ds_write_b128', 'ds_write_b96') and c.valu and regs(p.ops[1]) & c.w: n = max(n, 1)
    return n
def fix(lines):
    ins = []
    for l in lines:
        t = l.split(';')[0].strip()
        ins.append(None if (not t or t.endswith(':') or t.startswith('.')) else I(l))
    labels = {l.strip()[:-1]: i for i, l in enumerate(lines) if l.strip().endswith(':')}
    pad = [0] * len(lines)
    preds = {}
    for i, x in enumerate(ins):
        if x and x.op.startswith(('s_cbranch', 's_branch')) and x.ops[0] in labels: preds.setdefault(labels[x.ops[0]], []).append(i)
    def back(i, dist, c, seen):
        best = 0; j = i - 1
        while j >= 0 and dist < 20:
            if j in preds:
                for b in preds[j]:
                    if (b, dist) not in seen:
                        seen.add((b, dist)); best = max(best, back(b + 1, dist, c, seen))
            x = ins[j]
            if x is not None:
                if x.op in ('s_endpgm',) or (x.op == 's_branch' and j != i - 1): break
                best = max(best, need(x, c) - dist)
                dist += x.states() + pad[j]
            j -= 1
        return best
    for it in range(2):
        for i, c in enumerate(ins):
            if c is None or c.salu: continue
            e = back(i, pad[i], c, set())
            if e > 0: pad[i] += e
    out = []; tot = 0
    for i, l in enumerate(lines):
        p = pad[i]; tot += p
        while p > 0:
            k = min(p, 16); out.append(f'  s_nop {k-1}'); p -= k
        out.append(l)
    return out, tot
```

```python
import sys; sys.path.insert(0,'work')
from gen import *
import haz
WS_XN=0; WS_XT=0x200000; WS_ST=0x400000; WS_H=0x800000
XB=2048*896; WB=448*3584; PB=448*512
LOG2E=0x3fb8aa3b; NLOG2E=0xbfb8aa3b
def ws_srd(A, d, base, off, n):
    A(f's_add_u32 s{d}, s{base}, {hex(off)}\ns_addc_u32 s{d+1}, s{base+1}, 0\ns_and_b32 s{d+1}, s{d+1}, 0xffff\ns_mov_b32 s{d+2}, {n}\ns_mov_b32 s{d+3}, 0x20000')
def bfr(A, d, s):
    A(f'v_cvt_pk_bf16_f32 v{d}, v{s}, v{s}\nv_and_b32 v{d}, 0xffff0000, v{d}')

def k_ln(A):
    n='ln_kernel'; A.begin(n)
    A(f'''s_cmp_ge_u32 s2, 128
    s_cbranch_scc1 LN_END
    s_load_dwordx2 s[4:5], s[0:1], 0
    s_load_dwordx2 s[6:7], s[0:1], 120
    v_lshrrev_b32 v1, 2, v0
    v_and_b32 v2, 3, v0
    s_lshl_b32 s3, s2, 4
    v_add_u32 v1, s3, v1
    v_mul_u32_u24 v3, 896, v1
    v_lshl_add_u32 v3, v2, 4, v3
    s_waitcnt lgkmcnt(0)''')
    A.srd(8,4,XB); ws_srd(A,12,6,WS_XN,XB); ws_srd(A,16,6,WS_XT,XB)
    for j in range(14): A(f'buffer_load_dwordx4 {vr(8+4*j,4)}, v3, s[8:11], 0 offen offset:{64*j}')
    A('v_mov_b32 v4, 0\nv_mov_b32 v5, 0\ns_mov_b32 s20, 0x3f803f80\ns_waitcnt vmcnt(0)')
    for j in range(56): A(f'v_dot2_f32_bf16 v4, v{8+j}, s20, v4\nv_dot2_f32_bf16 v5, v{8+j}, v{8+j}, v5')
    for r in (4,5):
        A(f'v_add_f32_dpp v{r}, v{r}, v{r} quad_perm:[1,0,3,2] row_mask:0xf bank_mask:0xf\nv_add_f32_dpp v{r}, v{r}, v{r} quad_perm:[2,3,0,1] row_mask:0xf bank_mask:0xf')
    import struct
    f=lambda x: hex(struct.unpack('<I',struct.pack('<f',x))[0])
    A(f'''v_mul_f32 v4, {f(1/448)}, v4
    v_mul_f32 v5, {f(1/448)}, v5
    v_fma_f32 v5, -v4, v4, v5
    v_max_f32 v5, 0, v5''')
    bfr(A,4,4); bfr(A,5,5); A(f'v_add_f32 v5, {f(1e-5)}, v5'); bfr(A,5,5); A('v_sqrt_f32 v5, v5'); bfr(A,5,5); A('v_rcp_f32 v5, v5')
    for j in range(56):
        r=8+j
        A(f'''v_lshlrev_b32 v6, 16, v{r}
        v_and_b32 v7, 0xffff0000, v{r}
        v_sub_f32 v6, v6, v4
        v_sub_f32 v7, v7, v4
        v_cvt_pk_bf16_f32 v{r}, v6, v7
        v_lshlrev_b32 v6, 16, v{r}
        v_and_b32 v7, 0xffff0000, v{r}
        v_mul_f32 v6, v6, v5
        v_mul_f32 v7, v7, v5
        v_cvt_pk_bf16_f32 v{r}, v6, v7''')
    for j in range(14): A(f'buffer_store_dwordx4 {vr(8+4*j,4)}, v3, s[12:15], 0 offen offset:{64*j}')
    A('v_lshlrev_b32 v6, 15, v2\nv_lshl_add_u32 v6, v1, 1, v6')
    for j in range(14):
        for e in range(8):
            A(f's_mov_b32 s21, {(32*j+e)*4096}')
            A(f'buffer_store_short{"_d16_hi" if e&1 else ""} v{8+4*j+e//2}, v6, s[16:19], s21 offen')
    A('LN_END:\ns_endpgm'); A.end(n,64); A.launch(n,128,64,0)

def k_gemm1(A):
    n='gemm1_kernel'; A.begin(n)
    A(f'''s_cmp_ge_u32 s2, 224
    s_cbranch_scc1 G1_END
    s_load_dwordx4 s[4:7], s[0:1], 80
    s_load_dwordx2 s[24:25], s[0:1], 120
    s_and_b32 s26, s2, 7
    s_lshr_b32 s27, s2, 3
    s_mul_i32 s28, s27, 37
    s_lshr_b32 s28, s28, 8
    s_mul_i32 s29, s28, 7
    s_sub_u32 s29, s27, s29
    s_lshr_b32 s30, s26, 1
    s_lshl_b32 s30, s30, 2
    s_add_u32 s30, s30, s28
    s_and_b32 s31, s26, 1
    s_mul_i32 s31, s31, 7
    s_add_u32 s31, s31, s29
    v_lshrrev_b32 v1, 6, v0
    v_and_b32 v0, 63, v0
    v_readfirstlane_b32 s3, v1
    s_waitcnt lgkmcnt(0)''')
    A.srd(8,4,WB); A.srd(12,6,WB); ws_srd(A,16,24,WS_XN,XB); ws_srd(A,20,24,WS_H,2048*3584)
    A(f'''v_lshrrev_b32 v4, 3, v0
    v_lshrrev_b32 v5, 4, v0
    s_and_b32 s32, s3, 1
    s_lshl_b32 s32, s32, 2
    v_add_u32 v5, s32, v5
    v_and_b32 v6, 7, v0
    v_xor_b32 v5, v5, v6
    v_mul_u32_u24 v2, 896, v4
    v_lshl_add_u32 v2, v5, 4, v2
    v_lshrrev_b32 v4, 4, v0
    v_and_b32 v5, 15, v0
    v_lshlrev_b32 v6, 2, v4
    v_xor_b32 v5, v5, v6
    v_mul_u32_u24 v3, 3584, v4
    v_lshl_add_u32 v3, v5, 4, v3
    s_lshl_b32 s33, s30, 7
    s_lshl_b32 s34, s3, 3
    s_add_u32 s33, s33, s34
    s_mul_i32 s33, s33, 896
    s_mul_i32 s34, s3, {4*3584}
    s_lshl_b32 s35, s31, 8
    s_add_u32 s34, s34, s35
    s_lshl_b32 s35, s3, 10
    s_add_u32 s36, s28, s29
    s_add_u32 s36, s36, s28
    s_cmp_ge_u32 s36, 7
    s_cselect_b32 s37, 7, 0
    s_sub_u32 s36, s36, s37''')
    def dma(slot):
        A(f's_lshl_b32 s37, s36, 7\ns_add_u32 s37, s37, s33\ns_mul_i32 s38, s36, {64*3584}\ns_add_u32 s38, s38, s34')
        for i in range(4):
            A(f's_add_u32 m0, s35, {slot*16384+i*4096}\ns_add_u32 s39, s37, {i*32*896}\nbuffer_load_dwordx4 v2, s[16:19], s39 offen lds')
            A(f's_add_u32 m0, s35, {49152+slot*16384+i*4096}\ns_add_u32 s39, s38, {i*16*3584}\nbuffer_load_dwordx4 v3, s[8:11], s39 offen lds')
            A(f's_add_u32 m0, s35, {98304+slot*16384+i*4096}\ns_nop 0\nbuffer_load_dwordx4 v3, s[12:15], s39 offen lds')
        A('s_add_u32 s36, s36, 1\ns_cmp_eq_u32 s36, 7\ns_cselect_b32 s36, 0, s36')
    dma(0); dma(1); dma(2)
    A(f'''v_and_b32 v4, 31, v0
    v_lshrrev_b32 v5, 5, v0
    v_bfe_u32 v6, v0, 1, 3
    v_xor_b32 v5, v5, v6
    s_and_b32 s37, s3, 1
    s_lshl_b32 s37, s37, 13
    v_lshl_add_u32 v4, v4, 7, s37''')
    for ks in range(4): A(f'v_xor_b32 v6, {2*ks}, v5\nv_lshl_add_u32 v{8+ks}, v6, 4, v4')
    A(f'''v_bfe_u32 v4, v0, 2, 2
    v_lshrrev_b32 v5, 5, v0
    v_lshl_add_u32 v5, v5, 3, v4
    v_lshlrev_b32 v5, 8, v5
    v_bfe_u32 v6, v0, 4, 1
    v_lshl_add_u32 v5, v6, 5, v5
    v_and_b32 v6, 3, v0
    v_lshl_add_u32 v5, v6, 3, v5
    v_add_u32 v5, 49152, v5
    s_and_b32 s37, s3, 2
    v_xor_b32 v4, s37, v4
    v_lshl_add_u32 v12, v4, 6, v5
    v_xor_b32 v4, 1, v4
    v_lshl_add_u32 v13, v4, 6, v5
    v_add_u32 v14, 49152, v12
    v_add_u32 v15, 49152, v13''')
    FR=16; ACC=64
    def reads(step):
        s,ks=divmod(step,4); slot=s%3; b=FR+24*(step&1); out=[]
        for ti in range(2): out.append(f'ds_read_b128 {vr(b+4*ti,4)}, v{8+ks} offset:{slot*16384+ti*4096}')
        for gu in range(2):
            for fi in range(2):
                for p in range(2): out.append(f'ds_read_b64_tr_b16 {vr(b+8+8*gu+4*fi+2*p,2)}, v{12+2*gu+fi} offset:{slot*16384+ks*4096+p*1024}')
        return out
    def mfmas(step):
        b=FR+24*(step&1); out=[]
        for gu in range(2):
            for fi in range(2):
                for ti in range(2):
                    a=ACC+16*(4*ti+2*fi+gu)
                    out.append(f'v_mfma_f32_32x32x16_bf16 {vr(a,16)}, {vr(b+8+8*gu+4*fi,4)}, {vr(b+4*ti,4)}, {"0" if step==0 else vr(a,16)}')
        return out
    A('s_waitcnt vmcnt(24)\ns_barrier')
    for r in reads(0): A(r)
    for step in range(28):
        A('s_waitcnt lgkmcnt(0)')
        nxt = step+1
        if nxt<28 and nxt%4==0:
            s=nxt//4
            A(f's_waitcnt vmcnt({12 if s<6 else 0})\ns_barrier')
            if s+2<7: dma((s+2)%3)
        rd = reads(nxt) if nxt<28 else []
        for i,m in enumerate(mfmas(step)):
            A(m)
            for r in rd[2*i:2*i+2]: A(r)
    A(f'''s_lshl_b32 s37, s30, 2
    s_and_b32 s38, s3, 1
    s_lshl_b32 s38, s38, 1
    s_add_u32 s37, s37, s38
    s_mul_i32 s37, s37, 112
    s_lshl_b32 s38, s31, 3
    s_add_u32 s37, s37, s38
    s_and_b32 s38, s3, 2
    s_lshl_b32 s38, s38, 1
    s_add_u32 s37, s37, s38
    s_lshl_b32 s37, s37, 10
    s_add_u32 s38, s37, {112*1024}
    v_lshlrev_b32 v2, 4, v0
    s_mov_b32 s40, {hex(NLOG2E)}
    s_mov_b32 s42, 1.0''')
    for ti in range(2):
        for fi in range(2):
            g=ACC+16*(4*ti+2*fi); u=g+16
            for i in range(0,16,2): A(f'v_pk_mul_f32 {vr(g+i,2)}, {vr(g+i,2)}, s[40:41] op_sel_hi:[1,0]')
            for i in range(16): A(f'v_exp_f32 v{g+i}, v{g+i}')
            for i in range(0,16,2): A(f'v_pk_add_f32 {vr(g+i,2)}, {vr(g+i,2)}, s[42:43] op_sel_hi:[1,0]')
            for i in range(16): A(f'v_rcp_f32 v{g+i}, v{g+i}')
            for i in range(0,16,2): A(f'v_pk_mul_f32 {vr(u+i,2)}, {vr(u+i,2)}, {vr(g+i,2)}')
            for i in range(0,16,2): A(f'v_cvt_pk_bf16_f32 v{g+i//2}, v{u+i}, v{u+i+1}')
            for k in range(2): A(f'buffer_store_dwordx4 {vr(g+4*k,4)}, v2, s[20:23], s{37+ti} offen offset:{fi*2048+k*1024}')
    A('G1_END:\ns_endpgm'); A.end(n,192); A.launch(n,224,256,147456)

def k_gemm2(A):
    n='gemm2_kernel'; A.begin(n); D=8
    A(f'''s_cmp_ge_u32 s2, 224
    s_cbranch_scc1 G2_END
    s_load_dwordx4 s[4:7], s[0:1], 96
    s_load_dwordx2 s[24:25], s[0:1], 120
    s_load_dwordx2 s[44:45], s[0:1], 0
    s_and_b32 s26, s2, 7
    s_lshr_b32 s27, s2, 3
    s_mul_i32 s28, s27, 37
    s_lshr_b32 s28, s28, 8
    s_mul_i32 s29, s28, 7
    s_sub_u32 s31, s27, s29
    s_lshl_b32 s30, s26, 2
    s_add_u32 s30, s30, s28
    v_lshrrev_b32 v1, 6, v0
    v_and_b32 v0, 63, v0
    v_readfirstlane_b32 s3, v1
    s_waitcnt lgkmcnt(0)''')
    A.srd(8,4,WB); A.srd(12,6,XB); ws_srd(A,16,24,WS_ST,XB); ws_srd(A,20,24,WS_H,2048*3584); A.srd(48,44,XB)
    A(f'''v_lshrrev_b32 v4, 3, v0
    v_bfe_u32 v5, v0, 4, 1
    v_lshlrev_b32 v5, 2, v5
    v_and_b32 v6, 7, v0
    v_xor_b32 v5, v5, v6
    v_mul_u32_u24 v2, 896, v4
    v_lshl_add_u32 v2, v5, 4, v2
    v_lshlrev_b32 v3, 4, v0
    s_mul_i32 s33, s3, {448*896}
    s_lshl_b32 s34, s31, 7
    s_add_u32 s33, s33, s34
    s_lshr_b32 s40, s3, 1
    s_and_b32 s41, s3, 1
    s_lshl_b32 s42, s30, 1
    s_add_u32 s42, s42, s40
    s_xor_b32 s35, s42, 1
    s_mul_i32 s34, s42, 112
    s_mul_i32 s35, s35, 112
    s_mul_i32 s36, s3, 28
    s_add_u32 s34, s34, s36
    s_add_u32 s35, s35, s36
    s_lshl_b32 s34, s34, 10
    s_lshl_b32 s35, s35, 10
    s_mul_i32 s36, s3, {D*2048}''')
    HR=16; WF=HR+8*D; ACC=WF+16; XR=ACC+64; SR=XR+16
    def loads(step):
        sl=step%D
        for i in range(2):
            A(f's_add_u32 m0, s36, {sl*2048+i*1024}\ns_add_u32 s39, s33, {(step*16+8*i)*896}\nbuffer_load_dwordx4 v2, s[8:11], s39 offen lds')
        for i in range(2):
            A(f's_add_u32 s39, s{34+i}, {step*1024}\nbuffer_load_dwordx4 {vr(HR+8*sl+4*i,4)}, v3, s[20:23], s39 offen')
    for s in range(D): loads(s)
    A(f'''v_bfe_u32 v4, v0, 2, 2
    v_lshrrev_b32 v5, 5, v0
    v_lshl_add_u32 v5, v5, 2, v4
    v_lshl_add_u32 v5, v5, 7, s36
    v_bfe_u32 v6, v0, 4, 1
    v_lshl_add_u32 v5, v6, 5, v5
    v_and_b32 v6, 3, v0
    v_lshl_add_u32 v5, v6, 3, v5
    v_bfe_u32 v4, v0, 3, 1
    v_xor_b32 v4, s41, v4
    v_lshl_add_u32 v8, v4, 6, v5
    v_xor_b32 v4, 1, v4
    v_lshl_add_u32 v9, v4, 6, v5''')
    def reads(step):
        b=WF+8*(step&1)
        return [f'ds_read_b64_tr_b16 {vr(b+4*di+2*p,2)}, v{8+di} offset:{(step%D)*2048+p*1024}' for di in range(2) for p in range(2)]
    A(f's_waitcnt vmcnt({4*(D-1)})')
    for r in reads(0): A(r)
    for step in range(28):
        nxt=step+1
        if nxt<28:
            A(f's_waitcnt vmcnt({4*(min(step+D-1,27)-nxt)}) lgkmcnt(0)')
            for r in reads(nxt): A(r)
        else: A('s_waitcnt lgkmcnt(0)')
        for ti in range(2):
            for di in range(2):
                a=ACC+16*(2*ti+di)
                A(f'v_mfma_f32_32x32x16_bf16 {vr(a,16)}, {vr(HR+8*(step%D)+4*ti,4)}, {vr(WF+8*(step&1)+4*di,4)}, {"0" if step==0 else vr(a,16)}')
        if step+D<28: loads(step+D)
    A(f'''s_lshl_b32 s37, s31, 1
    s_add_u32 s37, s37, s41
    s_lshl_b32 s37, s37, 5
    v_and_b32 v4, 31, v0
    v_add_u32 v4, s37, v4
    v_lshrrev_b32 v5, 5, v0
    s_mul_i32 s38, s42, 448
    v_add_u32 v6, s38, v4
    v_lshlrev_b32 v6, 6, v6
    v_lshl_add_u32 v6, v5, 5, v6
    buffer_load_dwordx4 {vr(SR,4)}, v6, s[16:19], 0 offen
    buffer_load_dwordx4 {vr(SR+4,4)}, v6, s[16:19], 0 offen offset:16
    v_mul_u32_u24 v7, {4*896}, v5
    v_lshl_add_u32 v7, v4, 1, v7
    s_mul_i32 s38, s42, {32*896}''')
    for j in range(4):
        A(f's_add_u32 s{52+j}, s38, {8*j*896}')
        for r in range(4): A(f'buffer_load_ushort v{XR+4*j+r}, v7, s[48:51], s{52+j} offen offset:{r*896}')
    A('s_barrier')
    for j in range(1,4):
        A(f's_xor_b32 s37, s3, {j}\ns_mul_i32 s37, s37, {3*4096}\ns_add_u32 s37, s37, {(j-1)*4096}\nv_add_u32 v4, s37, v3')
        for k in range(4): A(f'ds_write_b128 v4, {vr(ACC+16*j+4*k,4)} offset:{k*1024}')
    A(f's_mul_i32 s37, s3, {3*4096}\nv_add_u32 v4, s37, v3\ns_waitcnt lgkmcnt(0)\ns_barrier')
    for j in range(1,4):
        for k in range(4): A(f'ds_read_b128 {vr(ACC+16*j+4*k,4)}, v4 offset:{(j-1)*4096+k*1024}')
    A('s_waitcnt lgkmcnt(0)')
    for j in range(1,4):
        for i in range(0,16,2): A(f'v_pk_add_f32 {vr(ACC+i,2)}, {vr(ACC+i,2)}, {vr(ACC+16*j+i,2)}')
    A('s_waitcnt vmcnt(0)')
    T=ACC+16
    for i in range(16):
        o=ACC+i; t=T+i
        bfr(A,o,o)
        A(f'v_mul_f32 v{t}, {hex(NLOG2E)}, v{o}\nv_exp_f32 v{t}, v{t}\nv_add_f32 v{t}, 1.0, v{t}\nv_rcp_f32 v{t}, v{t}\nv_mul_f32 v{o}, v{o}, v{t}')
        bfr(A,o,o)
        A(f'v_and_b32 v{t}, 0xffff0000, v{SR+i//2}' if i&1 else f'v_lshlrev_b32 v{t}, 16, v{SR+i//2}')
        A(f'v_mul_f32 v{o}, v{o}, v{t}'); bfr(A,o,o)
        A(f'v_lshlrev_b32 v{t}, 16, v{XR+i}\nv_add_f32 v{o}, v{o}, v{t}\nv_cvt_pk_bf16_f32 v{o}, v{o}, v{o}')
        A(f'buffer_store_short v{o}, v7, s[12:15], s{52+i//4} offen offset:{(i%4)*896}')
    A('G2_END:\ns_endpgm'); A.end(n,SR+8); A.launch(n,224,256,65536)
```

```python
from k0 import *
import struct
def fh(x): return hex(struct.unpack('<I',struct.pack('<f',x))[0])
def cmul(o,z,w,t):
    return [f'v_pk_mul_f32 {vr(t,2)}, {vr(z,2)}, {vr(w,2)} op_sel:[0,0] op_sel_hi:[0,1]',
            f'v_pk_fma_f32 {vr(o,2)}, {vr(z,2)}, {vr(w,2)}, {vr(t,2)} op_sel:[1,1,0] op_sel_hi:[1,0,1] neg_lo:[0,1,0]']
def interleave(*ls):
    out=[]; ls=[list(l) for l in ls]
    while any(ls):
        for l in ls:
            if l: out.append(l.pop(0))
    return out
TOE=0; TP=4160; TSZ=8*TP; UO=2*TSZ; USZ=4608; KD=UO+2*USZ; KSZ=4864; RED=KD+2*KSZ; CLDS=RED+6144
KP=272; KW=53*KP
def k_conv(A):
    n='conv_kernel'; A.begin(n)
    A(f'''s_cmp_ge_u32 s2, 224
    s_cbranch_scc1 CV_END
    s_load_dwordx16 s[4:19], s[0:1], 8
    s_load_dwordx2 s[20:21], s[0:1], 120
    v_lshrrev_b32 v1, 6, v0
    v_and_b32 v2, 63, v0
    v_readfirstlane_b32 s3, v1
    s_lshl_b32 s22, s2, 2
    s_waitcnt lgkmcnt(0)
    s_load_dword s23, s[16:17], s22
    s_load_dword s24, s[18:19], s22
    s_lshr_b32 s25, s3, 1
    s_and_b32 s26, s3, 1
    s_lshl_b32 s27, s2, 1
    s_add_u32 s27, s27, s25''')
    A('s_lshl_b32 s28, s2, 10\nv_lshl_add_u32 v3, v0, 2, s28')
    for i in range(6): A(f'global_load_dword v{8+i}, v3, s[{4+2*i}:{5+2*i}]')
    ws_srd(A,32,20,WS_XT,XB); ws_srd(A,36,20,WS_ST,XB)
    A(f'''v_lshlrev_b32 v4, 4, v2
    s_lshl_b32 s28, s27, 12
    s_lshl_b32 s29, s26, 11
    s_add_u32 s28, s28, s29
    s_mul_i32 s30, s25, {USZ}
    s_add_u32 s30, s30, {UO}
    s_add_u32 s29, s29, s30
    s_add_u32 m0, s29, 512
    s_nop 0
    buffer_load_dwordx4 v4, s[32:35], s28 offen lds
    buffer_load_dwordx4 v4, s[32:35], s28 offen offset:1024 lds
    v_mov_b32 v6, 0
    v_mov_b32 v7, 0
    v_lshl_add_u32 v5, v2, 3, s30
    ds_write_b64 v5, v[6:7]''')
    A(f's_mov_b32 s31, {KD}\nv_lshlrev_b32 v5, 3, v0\nv_sub_u32 v5, 2047, v5\nv_cvt_f32_u32 v5, v5')
    for e in range(0,8,2):
        A(f'''v_add_f32 v6, {fh(-e)}, v5
        v_add_f32 v7, {fh(-e-1)}, v5
        v_cvt_pk_bf16_f32 v6, v6, v7
        v_and_b32 v7, 0xffff0000, v6
        v_lshlrev_b32 v6, 16, v6
        v_cvt_u32_f32 v6, v6
        v_cvt_u32_f32 v7, v7
        v_lshl_add_u32 v{16+e}, v6, 1, s31
        v_lshl_add_u32 v{17+e}, v7, 1, s31''')
    A(f'''s_waitcnt lgkmcnt(0)
    s_lshl_b32 s28, s25, 4
    s_lshr_b32 s23, s23, s28
    s_lshl_b32 s23, s23, 16
    s_lshr_b32 s24, s24, s28
    s_lshl_b32 s24, s24, 16
    v_mov_b32 v5, {hex(LOG2E)}
    v_mul_f32 v5, s23, v5
    v_exp_f32 v5, v5''')
    bfr(A,5,5)
    A(f'''s_mul_i32 s28, s3, {KW}
    v_lshl_add_u32 v6, v2, 2, s28
    v_and_b32 v7, 31, v2
    v_mul_u32_u24 v7, {KP}, v7
    v_lshrrev_b32 v14, 5, v2
    v_lshl_add_u32 v7, v14, 4, v7
    v_add_u32 v7, s28, v7
    s_mov_b32 s40, {hex(LOG2E)}
    s_mov_b32 s41, {fh(0.15915494309189535)}
    s_mov_b32 s42, {fh(8.0)}
    s_mov_b32 s44, {fh(256.0)}
    s_waitcnt vmcnt(2)''')
    P=24; C=26; B=28; E1=30; E8=32; G=34; E16=36; T0=38; T1=40; T2=42; L0=44; L1=46; H=48
    Q=64
    ACC=72; FA=88
    for rho in range(2):
        un = (lambda d,s: f'v_and_b32 v{d}, 0xffff0000, v{s}') if rho else (lambda d,s: f'v_lshlrev_b32 v{d}, 16, v{s}')
        for d,s in ((P,8),(P+1,9),(B,10),(B+1,11),(C,12),(C+1,13)): A(un(d,s))
        A(f'v_pk_mul_f32 {vr(P,2)}, {vr(P,2)}, {vr(4,2)} op_sel:[0,1]\nv_pk_mul_f32 {vr(B,2)}, {vr(B,2)}, {vr(4,2)} op_sel:[0,1]\nv_pk_mul_f32 {vr(P,2)}, {vr(P,2)}, s[40:41]')
        for x in cmul(H,C,B,T0): A(x)
        def cexp(o,t,k):
            src=P; l=[]
            if k: l.append(f'v_pk_mul_f32 {vr(t,2)}, {vr(P,2)}, s[{k}:{k+1}] op_sel_hi:[1,0]'); src=t
            l+= [f'v_exp_f32 v{t}, v{src}', f'v_fract_f32 v{t+1}, v{src+1}', f'v_cos_f32 v{o}, v{t+1}', f'v_sin_f32 v{o+1}, v{t+1}',
                 f'v_pk_mul_f32 {vr(o,2)}, {vr(o,2)}, {vr(t,2)} op_sel_hi:[1,0]']
            return l
        for x in interleave(cexp(E8,T0,42),cexp(G,T1,44),cexp(E1,T2,0)): A(x)
        for x in cmul(E16,E8,E8,T0): A(x)
        if rho: A('s_waitcnt lgkmcnt(0)')
        def put(row,z,q,conj):
            return [f'v_cvt_pk_bf16_f32 v{q}, v{z}, {"-" if conj else ""}v{z+1}', f'ds_write_b32 v6, v{q} offset:{row*KP}']
        ev=[f'v_mov_b32 v{Q}, 0x3f80', f'ds_write_b32 v6, v{Q} offset:{21*KP}'] + put(23,E16,Q+1,0)
        z=E16
        for j in range(4,32,2): ev+=cmul(L0,z,E16,T0)+put(21+j,L0,Q+(j//2&1),0); z=L0
        od=put(22,E8,Q+2,0); z=E8
        for j in range(3,32,2): od+=cmul(L1,z,E16,T1)+put(21+j,L1,Q+2+(j//2&1),0); z=L1
        hh=put(0,H,Q+4,1); cnt=[1]
        def hstep(o,z,w,row):
            r=cmul(o,z,w,T2)+put(row,o,Q+4+(cnt[0]&1),1); cnt[0]+=1; return r
        for k in range(1,8): hh+=hstep(H+2*k,H+2*k-2,E1,k)
        for i,p in enumerate((0,2,4,6)): hh+=hstep(H+2*p,H+2*p,G,8+i)
        for i,p in enumerate((0,4,0,4)): hh+=hstep(H+2*p,H+2*p,G,12+i)
        for i in range(5): hh+=hstep(H,H,G,16+i)
        for x in interleave(ev,od,hh): A(x)
        A('s_waitcnt lgkmcnt(0)')
        for ks in range(8): A(f'ds_read_b128 {vr(FA+8*ks,4)}, v7 offset:{32*ks}\nds_read_b128 {vr(FA+8*ks+4,4)}, v7 offset:{21*KP+32*ks}')
        for ks in range(8):
            A(f's_waitcnt lgkmcnt({14-2*ks})')
            A(f'v_mfma_f32_32x32x16_bf16 {vr(ACC,16)}, {vr(FA+8*ks,4)}, {vr(FA+8*ks+4,4)}, {"0" if rho==0 and ks==0 else vr(ACC,16)}')
    A(f'''s_mul_i32 s28, s25, 3072
    s_add_u32 s28, s28, {RED}
    v_add_u32 v6, s28, v4
    s_cmp_eq_u32 s26, 0
    s_cbranch_scc1 CV_A''')
    for k in range(3): A(f'ds_write_b128 v6, {vr(ACC+4*k,4)} offset:{k*1024}')
    A('s_waitcnt lgkmcnt(0)\ns_barrier\ns_branch CV_B\nCV_A:')
    A(f'''s_mul_i32 s28, s25, {KSZ}
    s_add_u32 s28, s28, {KD}
    v_and_b32 v7, 31, v2
    v_lshl_add_u32 v7, v7, 4, s28
    v_lshl_add_u32 v24, v14, 3, v7
    v_cmp_eq_u32 vcc, 0, v14''')
    h0=[256,258,260,262,1024,1280,1536,1792]; h1=[512,516,768,772,2048,2049,2050,2051]
    for i in range(8): A(f'v_mov_b32 v26, {2*h1[i]}\nv_mov_b32 v27, {2*h0[i]}\nv_cndmask_b32 v26, v26, v27, vcc\nv_add_u32 v{28+i}, v26, v7')
    A('s_barrier')
    for k in range(3): A(f'ds_read_b128 {vr(FA+4*k,4)}, v6 offset:{k*1024}')
    A('s_waitcnt lgkmcnt(0)')
    for i in range(0,12,2): A(f'v_pk_add_f32 {vr(ACC+i,2)}, {vr(ACC+i,2)}, {vr(FA+i,2)}')
    for i in range(0,12,2): A(f'v_cvt_pk_bf16_f32 v{FA+i//2}, v{ACC+i}, v{ACC+i+1}')
    A(f'ds_write_b64 v24, {vr(FA,2)}')
    for i in range(8): A(f'ds_write_b16{"_d16_hi" if i&1 else ""} v{28+i}, v{FA+2+i//2}')
    A('s_waitcnt lgkmcnt(0)\nCV_B:\ns_barrier')
    EV=24
    for c in range(2):
        for e in range(8): A(f'ds_read_u16 v{48+8*c+e}, v{16+e} offset:{c*KSZ}')
    A(f'''v_lshlrev_b32 v6, 4, v0
    v_mov_b32 v40, 0
    v_mov_b32 v41, 0
    v_mov_b32 v42, 0
    v_mov_b32 v43, 0
    v_and_b32 v7, 15, v0
    v_mul_u32_u24 v7, {TP}, v7
    ds_write_b128 v7, v[40:43] offset:4096
    s_waitcnt lgkmcnt(0)''')
    for c in range(2):
        for k in range(4): A(f'v_lshl_or_b32 v{EV+8*c+k}, v{49+8*c+2*k}, 16, v{48+8*c+2*k}')
        A(f'ds_write_b128 v6, {vr(EV+8*c,4)} offset:{c*TSZ}')
    A('s_waitcnt lgkmcnt(0)\ns_barrier')
    for c in range(2): A(f'ds_read_b128 {vr(EV+8*c+4,4)}, v6 offset:{c*TSZ+16}')
    A('s_waitcnt lgkmcnt(0)')
    for c in range(2):
        E=EV+8*c; E2=40+24*c; O=E2+8; O2=O+8
        for k in range(1,7): A(f'v_mov_b32 v{E2+k-1}, v{E+k}')
        for k in range(6): A(f'v_alignbit_b32 v{O+k}, v{E+k+1}, v{E+k}, 16')
        for k in range(1,7): A(f'v_alignbit_b32 v{O2+k-1}, v{E+k+1}, v{E+k}, 16')
        for s,r in ((4,E+2),(2,E2),(6,E2+2),(1,O),(5,O+2),(3,O2),(7,O2+2)): A(f'ds_write_b128 v6, {vr(r,4)} offset:{c*TSZ+s*TP}')
    A(f'''v_and_b32 v8, 15, v2
    v_lshrrev_b32 v9, 4, v2
    v_sub_u32 v10, 15, v8
    v_and_b32 v11, 7, v10
    v_mul_u32_u24 v11, {TP}, v11
    v_lshrrev_b32 v10, 3, v10
    v_add_u32 v10, v10, v9
    v_lshl_add_u32 v10, v10, 4, v11
    s_mul_i32 s28, s25, {TSZ}
    s_lshl_b32 s29, s26, 8
    s_sub_u32 s28, s28, s29
    s_add_u32 s28, s28, {(252-12-224)*16}
    v_add_u32 v10, s28, v10
    v_lshlrev_b32 v11, 5, v8
    v_lshl_add_u32 v11, v9, 4, v11
    s_sub_u32 s28, s30, s29
    s_add_u32 s28, s28, {512-32-192}
    v_add_u32 v11, s28, v11
    s_waitcnt vmcnt(0) lgkmcnt(0)
    s_barrier''')
    Y=16; F=48
    def rd(g):
        b=F+64*(g&1); o=[]
        for m in range(8):
            o.append(f'ds_read_b128 {vr(b+4*m,4)}, v10 offset:{(3-g)*64+(7-m)*512}')
            o.append(f'ds_read_b128 {vr(b+32+4*m,4)}, v11 offset:{512*m+64*(3-g)}')
        return o
    for r in rd(0): A(r)
    for g in range(4):
        b=F+64*(g&1); A('s_waitcnt lgkmcnt(0)')
        nx=rd(g+1) if g<3 else []; i=0
        for m in range(8):
            for beta in range(m,8):
                A(f'v_mfma_f32_16x16x32_bf16 {vr(Y+4*beta,4)}, {vr(b+4*m,4)}, {vr(b+32+4*(beta-m),4)}, {"0" if g==0 and m==0 else vr(Y+4*beta,4)}')
                if i%2==0 and nx: A(nx.pop(0))
                i+=1
    A('s_barrier\ns_cmp_eq_u32 s26, 0\ns_cbranch_scc1 CV_C')
    for i in range(16): A(f'v_swap_b32 v{Y+i}, v{Y+16+i}')
    A(f'CV_C:\ns_lshl_b32 s28, s3, 12\nv_add_u32 v6, s28, v4\nv_xor_b32 v7, 4096, v6')
    for k in range(4): A(f'ds_write_b128 v6, {vr(Y+16+4*k,4)} offset:{k*1024}')
    A(f'''v_lshlrev_b32 v12, 5, v8
    v_lshl_add_u32 v12, v9, 3, v12
    s_lshl_b32 s28, s26, 11
    s_add_u32 s28, s28, s30
    v_add_u32 v12, s28, v12''')
    for k in range(4): A(f'ds_read_b64 {vr(F+2*k,2)}, v12 offset:{512+512*k}')
    A(f'''v_lshrrev_b32 v13, 1, v8
    v_mul_u32_u24 v13, {448*64}, v13
    v_and_b32 v14, 1, v9
    v_lshl_add_u32 v13, v14, 5, v13
    v_and_b32 v14, 1, v8
    v_lshl_add_u32 v13, v14, 4, v13
    v_lshrrev_b32 v14, 1, v9
    v_lshl_add_u32 v13, v14, 3, v13
    s_mul_i32 s28, s26, {32*448*64}
    s_lshl_b32 s29, s27, 6
    s_add_u32 s28, s28, s29
    s_waitcnt lgkmcnt(0)
    s_barrier''')
    for k in range(4): A(f'ds_read_b128 {vr(Y+16+4*k,4)}, v7 offset:{k*1024}')
    A('s_waitcnt lgkmcnt(0)')
    for i in range(0,16,2):
        y=Y+i; u=F+i//2; t=F+8
        A(f'''v_pk_add_f32 {vr(y,2)}, {vr(y,2)}, {vr(y+16,2)}
        v_lshlrev_b32 v{t}, 16, v{u}
        v_and_b32 v{t+1}, 0xffff0000, v{u}
        v_cvt_pk_bf16_f32 v{y}, v{y}, v{y+1}
        v_pk_mul_f32 {vr(t,2)}, {vr(t,2)}, s[24:25] op_sel_hi:[1,0]
        v_and_b32 v{y+1}, 0xffff0000, v{y}
        v_lshlrev_b32 v{y}, 16, v{y}
        v_cvt_pk_bf16_f32 v{t}, v{t}, v{t+1}
        v_and_b32 v{t+1}, 0xffff0000, v{t}
        v_lshlrev_b32 v{t}, 16, v{t}
        v_pk_add_f32 {vr(y,2)}, {vr(y,2)}, {vr(t,2)}
        v_cvt_pk_bf16_f32 v{u}, v{y}, v{y+1}''')
    for k in range(4): A(f's_add_u32 s29, s28, {k*8*448*64}\nbuffer_store_dwordx2 {vr(F+2*k,2)}, v13, s[36:39], s29 offen')
    A('CV_END:\ns_endpgm'); A.end(n,176); A.launch(n,224,256,CLDS)
if __name__=='__main__':
    A=Asm(); k_ln(A); k_gemm1(A); k_conv(A); k_gemm2(A)
    A.lines,tot=haz.fix(A.lines); print('nops',tot)
    open(sys.argv[1],'w').write(A.text())
```

```python
NAME = 'recurrent_scan__ssm_conv_s4__glu_gated_glu__prompt'
class Asm:
    def __init__(s):
        s.lines = []; s.kernels = []; s.launches = []; s.lab = 0
    def __call__(s, txt):
        for l in txt.split('\n'):
            l = l.strip()
            if l: s.lines.append(('' if l.endswith(':') else '  ') + l)
    def label(s, base='L'):
        s.lab += 1; return f'{base}_{s.lab}'
    def begin(s, name):
        s.lines += ['.text', f'.globl {name}', '.p2align 8', f'.type {name},@function', f'{name}:']
    def end(s, name, vgpr, sgpr=96, accum=None, extra=''):
        if accum is None: accum = (vgpr + 3) // 4 * 4
        s.kernels.append(f'''.section .rodata,"a"
.p2align 6
.amdhsa_kernel {name}
  .amdhsa_next_free_vgpr {vgpr}
  .amdhsa_next_free_sgpr {sgpr}
  .amdhsa_accum_offset {accum}
  .amdhsa_group_segment_fixed_size 0
  .amdhsa_kernarg_size 128
  .amdhsa_user_sgpr_count 2
  .amdhsa_user_sgpr_kernarg_segment_ptr 1
  .amdhsa_system_sgpr_workgroup_id_x 1
{extra}.end_amdhsa_kernel''')
    def launch(s, name, grid, block, lds):
        s.launches.append(f'; @launch kernel={name} grid=({grid},1,1) block=({block},1,1) lds={lds}')
    def text(s):
        return '\n'.join(s.launches + ['.amdgcn_target "amdgcn-amd-amdhsa--gfx950"'] + s.lines + s.kernels) + '\n'
    prof = False
    def stamp(s, i):
        if s.prof: s(f's_memtime s[{64+2*i}:{65+2*i}]')
    def stamp0(s):
        if s.prof: s('s_memrealtime s[62:63]\ns_memtime s[64:65]')
    def dump(s, kidx, n, wave_sgpr=3, lane='v0'):
        if not s.prof: return
        s('s_waitcnt vmcnt(0)'); s.stamp(n)
        s(f's_memrealtime s[60:61]\ns_load_dwordx2 s[58:59], s[0:1], 120\ns_waitcnt lgkmcnt(0)\ns_mov_b64 exec, 1')
        s(f's_lshl_b32 s61, s2, 4\ns_add_u32 s61, s61, s{wave_sgpr}\ns_lshl_b32 s61, s61, 6\ns_add_u32 s61, s61, {0x2000000+kidx*0x100000}\nv_mov_b32 v1, s61')
        s('v_mov_b32 v2, s62\nglobal_store_dword v1, v2, s[58:59]\nv_mov_b32 v2, s60\nglobal_store_dword v1, v2, s[58:59] offset:4')
        for i in range(1, n+1):
            s(f's_sub_u32 s{64+2*i}, s{64+2*i}, s64\nv_mov_b32 v2, s{64+2*i}\nglobal_store_dword v1, v2, s[58:59] offset:{4+4*i}')
    def srd(s, d, base, nbytes):
        s(f's_mov_b32 s{d}, s{base}\ns_and_b32 s{d+1}, s{base+1}, 0xffff\ns_mov_b32 s{d+2}, {nbytes}\ns_mov_b32 s{d+3}, 0x20000')
def vr(a, n=1): return f'v{a}' if n == 1 else f'v[{a}:{a+n-1}]'
def sr(a, n=1): return f's{a}' if n == 1 else f's[{a}:{a+n-1}]'
def ar(a, n=1): return f'a{a}' if n == 1 else f'a[{a}:{a+n-1}]'
```

```python
import sys, struct; sys.path.insert(0,'work')
from gen import *
import haz
def fh(x): return hex(struct.unpack('<I',struct.pack('<f',x))[0])
XB=2048*896; WB=448*3584
LOG2E=0x3fb8aa3b; NLOG2E=0xbfb8aa3b
FH=0x10000; FW=0x30000; FX=0x38000; FS=0x40000; CSP=0x80000; STAT=0x100000
XT=0x200000; WD=0x400000; ST=0x600000; HH=0x800000; WSZ=0x1000000
KG=98304; KP=272; KW=53*KP; CST=155968; STT=158016; SYNC=160064; LDS=163840
TOE=81920; TP=4160; TSZ=8*TP; UO=16384; USZ=4608; KD=49152; KSZ=4864; RED=59392; SL=131072
WS='s[16:19]'
SPIN=20000
def bfr(A, d, s): A(f'v_cvt_pk_bf16_f32 v{d}, v{s}, v{s}\nv_and_b32 v{d}, 0xffff0000, v{d}')
def interleave(*ls):
    out=[]; ls=[list(l) for l in ls]
    while any(ls):
        for l in ls:
            if l: out.append(l.pop(0))
    return out
def poll(A, va, vt, first_issued=False, mid=''):
    L=A.label('PL'); D=A.label('PD')
    A(f's_mov_b32 s57, 0')
    if not first_issued: A(f'buffer_load_dword v{vt}, v{va}, {WS}, 0 offen sc1')
    A(f's_waitcnt vmcnt(0)\n{mid}\nv_cmp_ne_u32 vcc, s20, v{vt}\ns_cbranch_vccz {D}\n{L}:')
    A(f'buffer_load_dword v{vt}, v{va}, {WS}, 0 offen sc1\ns_add_u32 s57, s57, 1\ns_waitcnt vmcnt(0)\nv_cmp_ne_u32 vcc, s20, v{vt}\ns_cbranch_vccz {D}\ns_cmp_lt_u32 s57, {SPIN}\ns_cbranch_scc1 {L}\n{D}:')
def flag(A, soff, vt):
    return f's_mov_b64 exec, 1\nv_mov_b32 v{vt}, s20\nbuffer_store_dword v{vt}, off, {WS}, s{soff} sc1\ns_mov_b64 exec, -1'
def nonce(A): A('s_mul_i32 s20, s20, 0x9e3779b1\ns_add_u32 s20, s20, 0x7f4a7c15')

def gemm2(A, n, k0, WDR, ACC, HR, nh, vl, vl2, st):
    A(f'''s_mul_i32 s40, s23, {2*112}
    s_mul_i32 s41, s54, 28
    s_add_u32 s40, s40, s41
    s_add_u32 s40, s40, {k0+HH//1024}
    s_add_u32 s41, s40, {n}
    s_add_u32 s42, s40, s36
    s_lshl_b32 s40, s40, 10
    s_lshl_b32 s41, s41, 10
    s_lshl_b32 s42, s42, 10''')
    free=[HR+8*i for i in range(nh)]; loc={}; nxt=[0]
    def ld():
        while free and nxt[0]<n:
            r=free.pop(0); loc[nxt[0]]=r; nxt[0]+=1
            A(f'buffer_load_dwordx4 {vr(r,4)}, v{vl}, {WS}, s42 offen sc1\nbuffer_load_dwordx4 {vr(r+4,4)}, v{vl2}, {WS}, s42 offen sc1')
            if nxt[0]<n: A('s_add_u32 s42, s42, 1024\ns_cmp_eq_u32 s42, s41\ns_cselect_b32 s42, s40, s42')
    ld()
    for i in range(n):
        A(f's_waitcnt vmcnt({2*(nxt[0]-1-i)})')
        if i==0: A.stamp(st)
        for ti in range(2):
            for di in range(2):
                a=ACC+16*(2*ti+di)
                A(f'v_mfma_f32_32x32x16_bf16 {vr(a,16)}, {vr(WDR+8*i+4*di,4)}, {vr(loc[i]+4*ti,4)}, {"0" if i==0 else vr(a,16)}')
        free.extend([loc[i], WDR+8*i]); ld()
def wdloads(A, n, k0, WDR, vl, mul, qm):
    A(f'''s_mul_i32 s36, s52, {mul}
    s_lshr_b32 s36, s36, 4
    s_and_b32 s37, s23, 3
    s_mul_i32 s37, s37, {qm}
    s_add_u32 s36, s36, s37
    s_cmp_ge_u32 s36, {n}
    s_cselect_b32 s37, {n}, 0
    s_sub_u32 s36, s36, s37
    s_mul_i32 s40, s52, 112
    s_mul_i32 s41, s54, 28
    s_add_u32 s40, s40, s41
    s_add_u32 s40, s40, {k0+WD//2048}
    s_add_u32 s41, s40, {n}
    s_add_u32 s42, s40, s36
    s_lshl_b32 s40, s40, 11
    s_lshl_b32 s41, s41, 11
    s_lshl_b32 s42, s42, 11''')
    for i in range(n):
        for di in range(2): A(f'buffer_load_dwordx4 {vr(WDR+8*i+4*di,4)}, v{vl}, {WS}, s42 offen offset:{1024*di} sc1')
        if i<n-1: A('s_add_u32 s42, s42, 2048\ns_cmp_eq_u32 s42, s41\ns_cselect_b32 s42, s40, s42')

def final(A, st):
    ACC=16; R=96
    A(f'''FINAL:
    v_lshrrev_b32 v1, 3, v0
    v_and_b32 v2, 7, v0
    s_lshr_b32 s36, s23, 4
    s_mul_i32 s36, s36, 448
    s_lshl_b32 s37, s52, 6
    s_lshl_b32 s38, s3, 3
    s_add_u32 s37, s37, s38
    s_add_u32 s36, s36, s37
    s_lshl_b32 s36, s36, 7
    s_add_u32 s36, s36, {FS}
    v_lshl_add_u32 v3, v2, 7, s36
    buffer_load_dword v4, v3, {WS}, 0 offen sc1''')
    A.srd(24,4,XB); A.srd(28,14,XB)
    A(f'''s_lshl_b32 s39, s23, 6
    s_add_u32 s39, s39, s38
    s_mul_i32 s39, s39, 896
    s_lshl_b32 s40, s52, 7
    s_add_u32 s39, s39, s40
    v_mul_u32_u24 v5, 896, v1
    v_lshl_add_u32 v5, v2, 4, v5
    buffer_load_dwordx4 v[80:83], v5, s[24:27], s39 offen
    v_and_b32 v6, 31, v0
    v_lshrrev_b32 v7, 5, v0
    v_and_b32 v8, 1, v0
    v_xor_b32 v7, v7, v8
    v_lshl_or_b32 v7, v7, 3, v2
    v_lshlrev_b32 v7, 4, v7
    v_lshl_or_b32 v7, v6, 8, v7
    s_lshl_b32 s40, s3, 14
    v_add_u32 v7, s40, v7
    s_mul_i32 s40, s23, 448
    s_add_u32 s40, s40, s37
    s_lshl_b32 s40, s40, 7
    s_add_u32 s40, s40, {ST}
    v_lshlrev_b32 v6, 4, v0''')
    for k in range(8): A(f'v_xor_b32 v{88+k}, {16*k}, v7')
    poll(A,3,4,True)
    A(f'buffer_load_dwordx4 v[84:87], v6, {WS}, s40 offen sc1')
    A.stamp(st)
    A('s_barrier')
    for ti in range(2):
        for di in range(2):
            for g in range(4): A(f'ds_write_b128 v{88+4*di+g}, {vr(ACC+16*(2*ti+di)+4*g,4)} offset:{8192*ti}')
    A(f'''s_mul_i32 s40, s3, 1040
    s_add_u32 s40, s40, {SL}
    v_add_u32 v6, s40, v6
    v_and_b32 v8, 1, v1
    v_lshl_or_b32 v8, v8, 3, v1
    v_xor_b32 v8, v8, v2
    v_lshlrev_b32 v8, 4, v8
    v_add_u32 v9, s38, v1
    v_lshl_or_b32 v8, v9, 8, v8
    v_xor_b32 v10, 128, v8
    v_add_u32 v11, 0x10000, v8
    v_add_u32 v12, 0x10000, v10
    v_mul_u32_u24 v13, 1040, v2
    v_lshl_add_u32 v13, v9, 1, v13
    v_add_u32 v13, {SL}, v13
    s_waitcnt vmcnt(0)
    ds_write_b128 v6, v[84:87]
    s_waitcnt lgkmcnt(0)
    s_barrier''')
    A.stamp(st+1)
    for k in range(8):
        for hf in range(2): A(f'ds_read_b128 {vr(R+8*k+4*hf,4)}, v{(8,10,11,12)[2*(k>>2)+hf]} offset:{16384*(k&3)}')
    for k in range(1,8):
        A(f's_waitcnt lgkmcnt({min(15,14-2*k+(8 if k>3 else 0))})')
        for i in range(0,8,2): A(f'v_pk_add_f32 {vr(R+i,2)}, {vr(R+i,2)}, {vr(R+8*k+i,2)}')
        if k==3:
            for e in range(8): A(f'ds_read_u16 v{16+e}, v13 offset:{128*e}')
    T=24
    for i in range(0,8,2): A(f'v_cvt_pk_bf16_f32 v{T+i}, v{R+i}, v{R+i+1}')
    for i in range(0,8,2): A(f'v_lshlrev_b32 v{R+i}, 16, v{T+i}\nv_and_b32 v{R+i+1}, 0xffff0000, v{T+i}')
    for i in range(8): A(f'v_mul_f32 v{T+i}, {hex(NLOG2E)}, v{R+i}')
    for i in range(8): A(f'v_exp_f32 v{T+i}, v{T+i}')
    for i in range(8): A(f'v_add_f32 v{T+i}, 1.0, v{T+i}')
    for i in range(8): A(f'v_rcp_f32 v{T+i}, v{T+i}')
    for i in range(0,8,2): A(f'v_pk_mul_f32 {vr(R+i,2)}, {vr(R+i,2)}, {vr(T+i,2)}')
    A('s_waitcnt lgkmcnt(0)')
    for i in range(8): A(f'v_lshlrev_b32 v{16+i}, 16, v{16+i}')
    for i in range(0,8,2): A(f'v_cvt_pk_bf16_f32 v{T+i}, v{R+i}, v{R+i+1}')
    for i in range(0,8,2): A(f'v_lshlrev_b32 v{R+i}, 16, v{T+i}\nv_and_b32 v{R+i+1}, 0xffff0000, v{T+i}')
    for i in range(0,8,2): A(f'v_pk_mul_f32 {vr(R+i,2)}, {vr(R+i,2)}, {vr(16+i,2)}')
    for i in range(0,8,2): A(f'v_lshlrev_b32 v{16+i}, 16, v{80+i//2}\nv_and_b32 v{17+i}, 0xffff0000, v{80+i//2}')
    for i in range(0,8,2): A(f'v_cvt_pk_bf16_f32 v{T+i}, v{R+i}, v{R+i+1}')
    for i in range(0,8,2): A(f'v_lshlrev_b32 v{R+i}, 16, v{T+i}\nv_and_b32 v{R+i+1}, 0xffff0000, v{T+i}')
    for i in range(0,8,2): A(f'v_pk_add_f32 {vr(R+i,2)}, {vr(R+i,2)}, {vr(16+i,2)}')
    for i in range(0,8,2): A(f'v_cvt_pk_bf16_f32 v{T+i//2}, v{R+i}, v{R+i+1}')
    A(f'buffer_store_dwordx4 {vr(T,4)}, v5, s[28:31], s39 offen')
    A.dump(0,st+2)

def gwave(A):
    A('GW:\ns_setprio 3')
    A(f'''s_getpc_b64 s[36:37]
    PCREF:
    s_sub_u32 s36, s36, PCREF-{NAME}_kernel
    s_subb_u32 s37, s37, 0
    v_lshl_add_u32 v2, s3, 6, v0
    v_lshlrev_b32 v2, 7, v2
    v_min_u32 v2, CODEEND-{NAME}_kernel-4, v2
    v_mov_b32 v3, s37
    v_add_co_u32 v2, vcc, s36, v2
    v_addc_co_u32 v3, vcc, 0, v3, vcc
    global_load_dword v255, v[2:3], off
    v_lshrrev_b32 v5, 3, v0
    v_and_b32 v6, 7, v0
    v_mul_u32_u24 v5, 3584, v5
    v_lshl_add_u32 v5, v6, 4, v5
    s_mul_i32 s38, s21, {28*3584}
    s_lshl_b32 s39, s22, 8
    s_add_u32 s38, s38, s39
    s_and_b32 s39, s3, 1
    s_lshl_b32 s40, s39, 7
    s_add_u32 s38, s38, s40
    v_mov_b32 v28, 0
    v_mov_b32 v29, 0
    v_mov_b32 v30, 0
    v_mov_b32 v31, 0
    s_cmp_ge_u32 s3, 2
    s_waitcnt lgkmcnt(0)
    s_load_dword s20, s[6:7], 0
    s_cselect_b32 s8, s10, s8
    s_cselect_b32 s9, s11, s9''')
    A.srd(24,8,WB); A.srd(16,6,WSZ)
    for i in range(4):
        if i==3: A('s_mov_b32 exec_hi, 0')
        A(f'buffer_load_dwordx4 {vr(16+4*i,4)}, v5, s[24:27], s38 offen\ns_add_u32 s38, s38, {8*3584}')
    A('s_mov_b64 exec, -1')
    A(f'''v_and_b32 v4, 31, v0
    v_lshrrev_b32 v7, 5, v0
    v_bfe_u32 v6, v0, 2, 2
    v_xor_b32 v5, v7, v6
    s_lshl_b32 s40, s39, 12
    v_lshl_add_u32 v10, v4, 6, s40
    v_lshl_add_u32 v8, v5, 4, v10
    v_xor_b32 v9, 32, v8
    v_lshl_add_u32 v5, v7, 3, v6
    v_lshlrev_b32 v5, 8, v5
    v_bfe_u32 v10, v0, 4, 1
    v_lshl_add_u32 v5, v10, 5, v5
    v_and_b32 v10, 3, v0
    v_lshl_add_u32 v5, v10, 3, v5
    v_add_u32 v5, 32768, v5
    s_and_b32 s40, s3, 2
    v_xor_b32 v6, s40, v6
    v_lshl_add_u32 v12, v6, 6, v5
    v_xor_b32 v13, 64, v12
    v_add_u32 v14, 32768, v12
    v_add_u32 v15, 32768, v13
    s_lshl_b32 s40, s40, 8
    s_add_u32 s40, s40, {CST}
    v_lshl_add_u32 v10, v4, 3, s40
    s_lshl_b32 s40, s39, 10
    s_add_u32 s40, s40, {STT}
    v_lshl_add_u32 v11, v4, 4, s40
    s_mov_b32 s40, 0x3f80
    s_mov_b32 s41, 0x3f800000
    v_and_b32 v2, 7, v0
    v_lshl_or_b32 v2, v2, 1, v7
    v_bfe_u32 v3, v0, 4, 1
    v_lshl_or_b32 v2, v2, 1, v3
    v_bfe_u32 v3, v0, 3, 1
    v_lshl_or_b32 v2, v2, 1, v3
    v_lshlrev_b32 v2, 3, v2
    v_cmp_eq_u32 vcc, 1, v3
    s_lshl_b32 s42, s22, 4
    s_add_u32 s42, s42, s21
    s_lshl_b32 s42, s42, 2
    s_add_u32 s42, s42, s3
    s_lshl_b32 s42, s42, 9
    s_add_u32 s42, s42, {CSP}
    s_waitcnt lgkmcnt(0)''')
    nonce(A); A.stamp(1)
    for i in range(4):
        A(f's_waitcnt vmcnt({3-i})')
        for e in range(8): A(f'v_dot2_f32_bf16 v{32+e}, v{16+4*i+e//2}, s{40+(e&1)}, {"0" if i==0 else "v%d"%(32+e)}')
    for e in range(4): A(f'v_permlane32_swap_b32 v{32+e}, v{36+e}')
    for e in range(4): A(f'v_add_f32 v{32+e}, v{32+e}, v{36+e}')
    for e in range(2): A(f'v_permlane16_swap_b32 v{32+e}, v{34+e}')
    for e in range(2): A(f'v_add_f32 v{32+e}, v{32+e}, v{34+e}')
    for e in range(2): A(f'v_add_f32_dpp v{32+e}, v{32+e}, v{32+e} row_ror:8 row_mask:0xf bank_mask:0xf')
    A(f'v_cndmask_b32 v32, v32, v33, vcc\nv_mov_b32 v33, s20\nbuffer_store_dwordx2 v[32:33], v2, {WS}, s42 offen sc1')
    FR=16; ACC=64
    def reads(step):
        s,ks=divmod(step,2); o=(s%4)*8192; b=FR+24*(step&1); out=[]
        for ti in range(2): out.append(f'ds_read_b128 {vr(b+4*ti,4)}, v{8+ks} offset:{o+ti*2048}')
        for gu in range(2):
            for fi in range(2):
                for p in range(2): out.append(f'ds_read_b64_tr_b16 {vr(b+8+8*gu+4*fi+2*p,2)}, v{12+2*gu+fi} offset:{o+ks*4096+p*1024}')
        return out
    def mfmas(step):
        b=FR+24*(step&1); out=[]
        for gu in range(2):
            for fi in range(2):
                for ti in range(2):
                    a=ACC+16*(4*ti+2*fi+gu)
                    out.append(f'v_mfma_f32_32x32x16_bf16 {vr(a,16)}, {vr(b+8+8*gu+4*fi,4)}, {vr(b+4*ti,4)}, {"0" if step==0 else vr(a,16)}')
        return out
    A.stamp(2); A('s_barrier'); A.stamp(3)
    for r in reads(0): A(r)
    SV=192
    for step in range(29):
        A('s_waitcnt lgkmcnt(0)')
        nxt=step+1
        if nxt<28 and nxt%2==0:
            A('s_barrier')
            if nxt in (8,16): A.stamp(3+nxt//8)
        if nxt<28: rd=reads(nxt)
        elif nxt==28:
            b=FR; rd=[f'ds_read_b128 {vr(SV+4*ti,4)}, v11 offset:{512*ti}' for ti in range(2)]
            rd+=[f'ds_read_b64 {vr(b+8+8*gu+4*fi,2)}, v10 offset:{1024*gu+256*fi}' for gu in range(2) for fi in range(2)]
            rd+=[f'v_mov_b32 v{b+r}, 0\nv_mov_b32 v{b+r+1}, 0' for r in (2,6,10,14,18,22)]
            rd+=[f'v_cmp_gt_u32 vcc, 32, v0', f's_mul_i32 s36, s52, 28\ns_mul_i32 s37, s54, 7\ns_add_u32 s36, s36, s37\ns_lshl_b32 s36, s36, 7\ns_add_u32 s36, s36, {FW}', 'v_and_b32 v3, 3, v0\nv_lshl_add_u32 v4, v3, 7, s36', f'buffer_load_dword v5, v4, {WS}, 0 offen sc1']
        else:
            rd=[]
            for ti in range(2): A(f'v_cndmask_b32 v{FR+4*ti}, 0, v{SV+4*ti}, vcc\nv_and_b32 v{FR+4*ti+1}, 0xffff, v{FR+4*ti}')
        for i,m in enumerate(mfmas(step)):
            A(m)
            for r in rd[2*i:2*i+2]: A(r)
    A.stamp(6)
    A(f'''s_lshl_b32 s37, s21, 1
    s_add_u32 s37, s37, s39
    s_mul_i32 s44, s37, 28
    s_mul_i32 s37, s37, 224
    s_lshl_b32 s38, s22, 1
    s_lshr_b32 s40, s3, 1
    s_add_u32 s38, s38, s40
    s_add_u32 s44, s44, s38
    s_lshl_b32 s44, s44, 7
    s_add_u32 s44, s44, {FH}
    s_lshl_b32 s38, s38, 2
    s_add_u32 s37, s37, s38
    s_lshl_b32 s37, s37, 10
    s_add_u32 s37, s37, {HH}
    s_add_u32 s38, s37, {112*1024}
    v_lshlrev_b32 v2, 4, v0''')
    for ti in range(2):
        S=SV+4*ti
        for fi in range(2):
            g=ACC+16*(4*ti+2*fi); u=g+16
            for i in range(0,16,2): A(f'v_pk_mul_f32 {vr(g+i,2)}, {vr(g+i,2)}, {vr(S,2)} op_sel:[0,1] op_sel_hi:[1,1]')
            for i in range(16): A(f'v_exp_f32 v{g+i}, v{g+i}')
            for i in range(0,16,2): A(f'v_pk_fma_f32 {vr(g+i,2)}, {vr(g+i,2)}, {vr(S+2,2)}, {vr(S+2,2)} op_sel_hi:[1,0,0]')
            for i in range(16): A(f'v_rcp_f32 v{g+i}, v{g+i}')
            for i in range(0,16,2): A(f'v_pk_mul_f32 {vr(u+i,2)}, {vr(u+i,2)}, {vr(g+i,2)}')
            for i in range(0,16,2): A(f'v_cvt_pk_bf16_f32 v{g+i//2}, v{u+i}, v{u+i+1}')
            for k in range(2): A(f'buffer_store_dwordx4 {vr(g+4*k,4)}, v2, {WS}, s{37+ti} offen offset:{fi*2048+k*1024} sc1')
    A.stamp(7)
    A('s_setprio 0\ns_waitcnt vmcnt(8)\nv_cmp_ne_u32 vcc, s20, v5\ns_cbranch_vccz GW_OK')
    poll(A,4,5); A('GW_OK:')
    wdloads(A,16,0,128,2,37,4)
    A.stamp(8)
    A('s_waitcnt vmcnt(32)'); A(flag(A,44,5)); A.stamp(9)
    A(f's_mul_i32 s40, s23, 28\ns_mul_i32 s41, s54, 7\ns_add_u32 s40, s40, s41\ns_lshl_b32 s40, s40, 7\ns_add_u32 s40, s40, {FH}\nv_lshl_add_u32 v4, v3, 7, s40\nv_add_u32 v1, {112*1024}, v2')
    poll(A,4,5); A.stamp(10)
    gemm2(A,16,0,128,16,80,6,2,1,11)
    A('s_branch FINAL')

def kgen_stream():
    out=[];
    for rho in range(2):
        pool=list(range(40,110,2))
        def al(): return pool.pop(0)
        un=(lambda d,s: f'v_and_b32 v{d}, 0xffff0000, v{s}') if rho else (lambda d,s: f'v_lshlrev_b32 v{d}, 16, v{s}')
        P,B,C=24,26,28; NE1,NG,NE16,NB=30,31,32,33; Q=34
        for d,s in ((P,8),(P+1,9),(B,10),(B+1,11),(C,12),(C+1,13)): out.append(un(d,s))
        for r in (P,P+1,B,B+1): out.append(f'v_mul_f32 v{r}, v{r}, v5')
        out+=[f'v_mul_f32 v{P}, {hex(LOG2E)}, v{P}', f'v_mul_f32 v{P+1}, 0.15915494309189535, v{P+1}']
        def cm(z,w,nw):
            o=al(); return o,[f'v_mul_f32 v{o}, v{z}, v{w}', f'v_mul_f32 v{o+1}, v{z}, v{w+1}', f'v_fmac_f32 v{o}, v{z+1}, v{nw}', f'v_fmac_f32 v{o+1}, v{z+1}, v{w}']
        def cexp(k):
            o=al(); t=al(); src=P; l=[]
            if k!=1: l+=[f'v_mul_f32 v{t}, {fh(k)}, v{P}', f'v_mul_f32 v{t+1}, {fh(k)}, v{P+1}']; src=t
            l+=[f'v_exp_f32 v{t}, v{src}', f'v_fract_f32 v{t+1}, v{src+1}', f'v_cos_f32 v{o}, v{t+1}', f'v_sin_f32 v{o+1}, v{t+1}', f'v_mul_f32 v{o}, v{o}, v{t}', f'v_mul_f32 v{o+1}, v{o+1}, v{t}']
            return o,l
        neg=lambda d,s: f'v_xor_b32 v{d}, 0x80000000, v{s}'
        E8,a=cexp(8.0); G,b=cexp(256.0); E1,c=cexp(1)
        H0,d=cm(C,B,NB)
        out+=interleave(a,b,c,[neg(NB,B+1)]+d)
        E16,a=cm(E8,E8,NB)
        out+=[neg(NB,E8+1),neg(NE1,E1+1),neg(NG,G+1)]+a+[neg(NE16,E16+1)]
        if rho: out.append('s_waitcnt lgkmcnt(0)')
        def put(row,z,q,conj): return [f'v_cvt_pk_bf16_f32 v{q}, v{z}, {"-" if conj else ""}v{z+1}', f'ds_write_b32 v6, v{q} offset:{row*KP}']
        def chain(z,js,q):
            l=[]; pp=[al(),al()]
            for n,j in enumerate(js):
                pool.insert(0,pp[n&1]); o,a=cm(z,E16,NE16); l+=a+put(21+j,o,q+(n&1),0); z=o
            return l
        ev=[f'v_mov_b32 v{Q}, 0x3f80', f'ds_write_b32 v6, v{Q} offset:{21*KP}']+put(23,E16,Q+1,0)+chain(E16,range(4,32,2),Q)
        od=put(22,E8,Q+3,0)+chain(E8,range(3,32,2),Q+2)
        hh=put(0,H0,Q+4,1); Hs=[H0]; cnt=1
        for k in range(1,8):
            o,a=cm(Hs[-1],E1,NE1); Hs.append(o); hh+=a+put(k,o,Q+4+(cnt&1),1); cnt+=1
        for i,p in enumerate((0,2,4,6,0,4,0,4,0,0,0,0,0)):
            o,a=cm(Hs[p],G,NG); pool.append(Hs[p]); Hs[p]=o; hh+=a+put(8+i,o,Q+4+(cnt&1),1); cnt+=1
        out+=interleave(ev,od,hh)
        out.append('s_waitcnt lgkmcnt(0)')
        for ks in range(8): out+=[f'ds_read_b128 {vr(128+64*rho+8*ks,4)}, v7 offset:{32*ks}', f'ds_read_b128 {vr(132+64*rho+8*ks,4)}, v7 offset:{21*KP+32*ks}']
    return out

def awave(A, LA=3, rot1=0, nseg=11):
    sy=[0]
    def async_():
        sy[0]+=1; L=A.label('AS')
        A(f's_waitcnt lgkmcnt(0)\nv_mov_b32 v1, {sy[0]}\nds_write_b32 v14, v1\n{L}:\nds_read_b32 v1, v15\ns_waitcnt lgkmcnt(0)\nv_cmp_gt_u32 vcc, {sy[0]}, v1\ns_cbranch_vccnz {L}')
    A(f'''AW:
    v_lshrrev_b32 v4, 2, v0
    v_lshrrev_b32 v5, 4, v0
    v_and_b32 v6, 3, v0
    v_xor_b32 v6, v6, v5
    v_mul_u32_u24 v112, 896, v4
    v_lshl_add_u32 v112, v6, 4, v112
    v_add_u32 v113, 14336, v112
    v_and_b32 v6, 15, v0
    v_lshlrev_b32 v7, 2, v5
    v_xor_b32 v6, v6, v7
    v_mul_u32_u24 v114, 3584, v5
    v_lshl_add_u32 v114, v6, 4, v114
    v_add_u32 v115, 14336, v114
    s_mul_i32 s55, s21, {128*896}
    s_mul_i32 s96, s54, 28672
    s_add_u32 s55, s55, s96
    s_lshl_b32 s56, s22, 8
    s_add_u32 s56, s56, s96
    s_lshl_b32 s96, s54, 11
    v_lshl_add_u32 v2, s54, 6, v0
    s_lshl_b32 s97, s53, 10
    v_lshl_add_u32 v3, v2, 2, s97
    s_lshl_b32 s97, s53, 2''')
    if rot1:
        A(f's_add_u32 s98, s23, s52\ns_and_b32 s98, s98, 1\ns_mul_i32 s98, s98, 7') if rot1==2 else A(f's_and_b32 s98, s23, 3\ns_mul_i32 s98, s98, 7\ns_lshr_b32 s98, s98, 1\ns_lshl_b32 s99, s52, 1\ns_add_u32 s98, s98, s99\ns_cmp_ge_u32 s98, 14\ns_cselect_b32 s99, 14, 0\ns_sub_u32 s98, s98, s99')
        A(f's_lshl_b32 s99, s98, 6\ns_add_u32 s55, s55, s99\ns_mul_i32 s99, s98, {32*3584}\ns_add_u32 s56, s56, s99')
    A('s_waitcnt lgkmcnt(0)\ns_load_dword s20, s[6:7], 0\ns_load_dword s100, s[48:49], s97\ns_load_dword s101, s[50:51], s97')
    A.srd(24,4,XB); A.srd(28,8,WB); A.srd(32,10,WB)
    vm=[]
    def dma(s):
        o=(s%4)*8192; l=[]
        for i in range(2):
            for k,(v,srd,so) in enumerate(((112,24,55),(114,28,56),(114,32,56))):
                l.append((f's_add_u32 m0, s96, {o+32768*k+1024*i}\nbuffer_load_dwordx4 v{v+i}, {sr(srd,4)}, s{so} offen lds',s))
        adv=f's_add_u32 s55, s55, 64\ns_add_u32 s56, s56, {32*3584}'
        if rot1: adv+=f'\ns_add_u32 s98, s98, 1\ns_cmp_eq_u32 s98, 14\ns_cselect_b32 s99, 896, 0\ns_sub_u32 s55, s55, s99\ns_cselect_b32 s99, {448*3584}, 0\ns_sub_u32 s56, s56, s99'
        l[-1]=(l[-1][0]+'\n'+adv,s)
        return l
    def emit(x): A(x[0]); vm.append(x[1])
    def vwait(tag):
        idx=max(i for i,t in enumerate(vm) if t==tag); A(f's_waitcnt vmcnt({len(vm)-1-idx})')
    A.stamp(1)
    for x in dma(0): emit(x)
    for i in range(6): emit((f'global_load_dword v{8+i}, v3, s[{36+2*i}:{37+2*i}] nt','p'))
    for x in dma(1): emit(x)
    A.stamp(2)
    A.srd(16,6,WSZ)
    A(f'''s_lshr_b32 s36, s54, 1
    s_and_b32 s37, s54, 1
    v_mov_b32 v1, 0
    s_lshl_b32 s38, s54, 2
    s_add_u32 s38, s38, {SYNC}
    v_mov_b32 v14, s38
    v_and_b32 v15, 3, v0
    v_lshlrev_b32 v15, 2, v15
    v_add_u32 v15, {SYNC}, v15
    ds_write_b32 v14, v1
    s_mov_b32 s38, {KD}
    v_lshlrev_b32 v5, 3, v2
    v_sub_u32 v5, 2047, v5
    v_cvt_f32_u32 v5, v5''')
    for e in range(0,8,2):
        A(f'''v_add_f32 v6, {fh(-e)}, v5
        v_add_f32 v7, {fh(-e-1)}, v5
        v_cvt_pk_bf16_f32 v6, v6, v7
        v_and_b32 v7, 0xffff0000, v6
        v_lshlrev_b32 v6, 16, v6
        v_cvt_u32_f32 v6, v6
        v_cvt_u32_f32 v7, v7
        v_lshl_add_u32 v{16+e}, v6, 1, s38
        v_lshl_add_u32 v{17+e}, v7, 1, s38''')
    A(f'''s_mul_i32 s38, s54, {KW}
    s_add_u32 s38, s38, {KG}
    v_lshl_add_u32 v6, v0, 2, s38
    v_and_b32 v7, 31, v0
    v_mul_u32_u24 v7, {KP}, v7
    v_lshrrev_b32 v4, 5, v0
    v_lshl_add_u32 v7, v4, 4, v7
    v_add_u32 v7, s38, v7
    s_waitcnt lgkmcnt(0)
    s_lshl_b32 s38, s36, 4
    s_lshr_b32 s100, s100, s38
    s_lshl_b32 s100, s100, 16
    s_lshr_b32 s101, s101, s38
    s_lshl_b32 s46, s101, 16
    v_mov_b32 v5, {hex(LOG2E)}
    v_mul_f32 v5, s100, v5
    v_exp_f32 v5, v5''')
    bfr(A,5,5); nonce(A)
    vwait(0); A('s_barrier'); A.stamp(3)
    ks=kgen_stream(); per=-(-len(ks)//nseg); nd=2
    for s in range(13):
        dm=[]
        while nd<14 and nd<=s+LA and len(dm)<(12 if s>0 else 6): dm+=dma(nd); nd+=1
        seg=ks[s*per:(s+1)*per]
        if s==0:
            for x in dm[:2]: emit(x)
            dm=dm[2:]; vwait('p')
        gap=max(1,len(seg)//(len(dm)+1)) if dm else 1<<30
        for i,x in enumerate(seg):
            if i%gap==0 and dm: emit(dm.pop(0))
            A(x)
        for x in dm: emit(x)
        if s==nseg:
            A.stamp(4)
            A(f'''s_lshl_b32 s38, s22, 15
            s_add_u32 s38, s38, {CSP}
            v_lshlrev_b32 v24, 3, v2
            s_lshl_b32 s39, s21, 11
            s_add_u32 s39, s39, {STAT}
            v_and_b32 v25, 127, v2
            v_lshlrev_b32 v25, 4, v25
            s_mov_b32 s57, 0''')
            def csl():
                for i in range(16): emit((f's_add_u32 s40, s38, {4096*(i//2)}\n'*(1-i%2)+f'buffer_load_dwordx2 {vr(32+2*i,2)}, v24, {WS}, s40 offen offset:{2048*(i%2)} sc1','c'))
                emit((f'buffer_load_dwordx4 v[28:31], v25, {WS}, s39 offen sc1','c'))
            csl()
        if s==12:
            A('s_branch AC_1\nAC_0:\ns_mov_b64 exec, -1'); csl()
            A('AC_1:\ns_waitcnt vmcnt(0)\ns_add_u32 s57, s57, 1')
            for r in list(range(33,64,2))+[31]: A(f'v_cmpx_eq_u32 vcc, s20, v{r}')
            A(f's_nop 1\ns_cmp_eq_u64 exec, -1\ns_cbranch_scc1 AC_2\ns_cmp_lt_u32 s57, {SPIN}\ns_cbranch_scc1 AC_0\ns_mov_b64 exec, -1\nAC_2:')
            for st in (16,8,4,2):
                for r in range(0,st,2): A(f'v_add_f32 v{32+r}, v{32+r}, v{32+r+st}')
            A(f'''v_add_u32 v25, {STT}, v25
            ds_write_b128 v25, v[28:31]
            v_cvt_pk_bf16_f32 v33, v32, v32
            v_and_b32 v33, 0xffff0000, v33
            v_sub_f32 v34, v32, v33
            v_cvt_pk_bf16_f32 v36, v32, v34
            v_and_b32 v33, 0xffff0000, v36
            v_sub_f32 v34, v34, v33
            v_cvt_pk_bf16_f32 v37, v34, 0
            v_add_u32 v24, {CST}, v24
            ds_write_b64 v24, v[36:37]
            s_waitcnt lgkmcnt(0)''')
            A.stamp(5)
        else: vwait(s+1)
        A('s_barrier')
    A.stamp(6)
    A(f'''s_and_b32 s38, s2, 7
    s_lshl_b32 s38, s38, 12
    s_add_u32 s38, s38, {FX}
    s_mul_i32 s39, s52, 28
    s_mul_i32 s40, s54, 7
    s_add_u32 s39, s39, s40
    s_lshl_b32 s39, s39, 7
    s_add_u32 s39, s39, {FW+(4-32)*128}
    v_min_u32 v8, 34, v0
    v_mov_b32 v9, s38
    v_mov_b32 v10, s39
    v_cmp_gt_u32 vcc, 32, v0
    v_cndmask_b32 v9, v10, v9, vcc
    v_lshl_add_u32 v8, v8, 7, v9
    buffer_load_dword v9, v8, {WS}, 0 offen sc1''')
    ACC=112
    for k in range(16): A(f'v_mfma_f32_32x32x16_bf16 {vr(ACC,16)}, {vr(128+8*k,4)}, {vr(132+8*k,4)}, {"0" if k==0 else vr(ACC,16)}')
    A(f'''v_lshlrev_b32 v3, 4, v0
    s_mul_i32 s38, s36, 3072
    s_add_u32 s38, s38, {RED}
    v_add_u32 v6, s38, v3
    s_mul_i32 s47, s36, {USZ}
    s_add_u32 s47, s47, {UO}
    v_mov_b32 v40, 0
    v_mov_b32 v41, 0
    v_mov_b32 v42, 0
    v_mov_b32 v43, 0
    v_lshl_add_u32 v7, v0, 3, s47
    ds_write_b64 v7, v[40:41]
    v_and_b32 v7, 15, v0
    v_mul_u32_u24 v7, {TP}, v7
    v_add_u32 v7, {TOE}, v7
    ds_write_b128 v7, v[40:43] offset:4096
    s_mul_i32 s38, s36, {KSZ}
    s_add_u32 s38, s38, {KD}
    v_and_b32 v7, 31, v0
    v_lshl_add_u32 v7, v7, 4, s38
    v_lshl_add_u32 v24, v4, 3, v7''')
    h0=[256,258,260,262,1024,1280,1536,1792]; h1=[512,516,768,772,2048,2049,2050,2051]
    for i in range(8): A(f'v_mov_b32 v26, {2*h1[i]}\nv_mov_b32 v27, {2*h0[i]}\nv_cndmask_b32 v26, v26, v27, vcc\nv_add_u32 v{28+i}, v26, v7')
    A('s_cmp_eq_u32 s37, 0\ns_cbranch_scc1 CV_A')
    for k in range(3): A(f'ds_write_b128 v6, {vr(ACC+4*k,4)} offset:{k*1024}')
    A('CV_A:'); async_()
    A('s_cmp_eq_u32 s37, 0\ns_cbranch_scc0 CV_B'); FA=48
    for k in range(3): A(f'ds_read_b128 {vr(FA+4*k,4)}, v6 offset:{k*1024}')
    A('s_waitcnt lgkmcnt(0)')
    for i in range(12): A(f'v_add_f32 v{ACC+i}, v{ACC+i}, v{FA+i}')
    for i in range(0,12,2): A(f'v_cvt_pk_bf16_f32 v{FA+i//2}, v{ACC+i}, v{ACC+i+1}')
    A(f'ds_write_b64 v24, {vr(FA,2)}')
    for i in range(8): A(f'ds_write_b16{"_d16_hi" if i&1 else ""} v{28+i}, v{FA+2+i//2}')
    A('CV_B:')
    poll(A,8,9,True); A.stamp(7)
    A(f'''s_lshr_b32 s38, s53, 1
    s_lshl_b32 s38, s38, 14
    s_and_b32 s39, s53, 1
    s_lshl_b32 s39, s39, 5
    s_add_u32 s38, s38, s39
    s_add_u32 s38, s38, {XT}
    s_add_u32 s39, s38, 8192
    v_lshrrev_b32 v8, 1, v2
    v_and_b32 v9, 1, v2
    v_lshlrev_b32 v10, 6, v8
    v_lshl_add_u32 v10, v9, 4, v10
    buffer_load_dwordx4 v[96:99], v10, {WS}, s38 offen sc1
    buffer_load_dwordx4 v[100:103], v10, {WS}, s39 offen sc1
    v_mul_u32_u24 v9, {USZ}, v9
    v_lshl_add_u32 v13, v8, 4, v9
    s_mov_b32 s48, s36
    s_mov_b32 s49, s37''')
    wdloads(A,12,16,160,3,27,3)
    async_()
    EV=24
    for c in range(2):
        for e in range(8): A(f'ds_read_u16 v{48+8*c+e}, v{16+e} offset:{c*KSZ}')
    A(f'v_lshlrev_b32 v6, 4, v2\nv_add_u32 v6, {TOE}, v6\ns_waitcnt lgkmcnt(0)')
    for c in range(2):
        for k in range(4): A(f'v_lshl_or_b32 v{EV+8*c+k}, v{49+8*c+2*k}, 16, v{48+8*c+2*k}')
        A(f'ds_write_b128 v6, {vr(EV+8*c,4)} offset:{c*TSZ}')
    async_()
    for c in range(2): A(f'ds_read_b128 {vr(EV+8*c+4,4)}, v6 offset:{c*TSZ+16}')
    A('s_waitcnt lgkmcnt(0)')
    for c in range(2):
        E=EV+8*c; E2=40+24*c; O=E2+8; O2=O+8
        for k in range(1,7): A(f'v_mov_b32 v{E2+k-1}, v{E+k}')
        for k in range(6): A(f'v_alignbit_b32 v{O+k}, v{E+k+1}, v{E+k}, 16')
        for k in range(1,7): A(f'v_alignbit_b32 v{O2+k-1}, v{E+k+1}, v{E+k}, 16')
        for s,r in ((4,E+2),(2,E2),(6,E2+2),(1,O),(5,O+2),(3,O2),(7,O2+2)): A(f'ds_write_b128 v6, {vr(r,4)} offset:{c*TSZ+s*TP}')
    A(f'''s_waitcnt vmcnt(24)
    ds_write_b128 v13, v[96:99] offset:{UO+512}
    ds_write_b128 v13, v[100:103] offset:{UO+512+2048}
    v_and_b32 v8, 15, v0
    v_lshrrev_b32 v9, 4, v0
    v_sub_u32 v10, 15, v8
    v_and_b32 v11, 7, v10
    v_mul_u32_u24 v11, {TP}, v11
    v_lshrrev_b32 v10, 3, v10
    v_add_u32 v10, v10, v9
    v_lshl_add_u32 v10, v10, 4, v11
    s_mul_i32 s38, s48, {TSZ}
    s_lshl_b32 s39, s49, 8
    s_sub_u32 s38, s38, s39
    s_add_u32 s38, s38, {TOE+(252-12-224)*16}
    v_add_u32 v10, s38, v10
    v_lshlrev_b32 v11, 5, v8
    v_lshl_add_u32 v11, v9, 4, v11
    s_sub_u32 s38, s47, s39
    s_add_u32 s38, s38, {512-32-192}
    v_add_u32 v11, s38, v11''')
    async_(); A.stamp(8)
    Y=16
    seq=[(g,m,b) for g in range(4) for m in range(8) for b in range(m,8)]
    need=[]; last={}
    for i,(g,m,b) in enumerate(seq):
        for f in (('A',g,m),('B',g,b-m)):
            if f not in last: need.append(f)
            last[f]=i
    pool=list(range(48,160,4)); loc={}; iss=[]; done=-1
    def rd():
        f=need.pop(0); r=pool.pop(0); loc[f]=r; iss.append(f)
        A(f'ds_read_b128 {vr(r,4)}, v10 offset:{(3-f[1])*64+(7-f[2])*512}' if f[0]=='A' else f'ds_read_b128 {vr(r,4)}, v11 offset:{512*f[2]+64*(3-f[1])}')
    for _ in range(12): rd()
    for i,(g,m,b) in enumerate(seq):
        fa,fb=('A',g,m),('B',g,b-m)
        k=max(iss.index(fa),iss.index(fb))
        if k>done: A(f's_waitcnt lgkmcnt({min(15,len(iss)-1-k)})'); done=k
        A(f'v_mfma_f32_16x16x32_bf16 {vr(Y+4*b,4)}, {vr(loc[fa],4)}, {vr(loc[fb],4)}, {"0" if g==0 and m==0 else vr(Y+4*b,4)}')
        for f in (fa,fb):
            if last[f]==i: pool.append(loc[f])
        if need and pool and len(iss)-1-done<12: rd()
    A.stamp(9)
    async_()
    F=48
    A('s_cmp_eq_u32 s49, 0\ns_cbranch_scc1 CV_C')
    for i in range(16): A(f'v_swap_b32 v{Y+i}, v{Y+16+i}')
    A(f'CV_C:\ns_lshl_b32 s38, s54, 12\ns_add_u32 s38, s38, {TOE}\nv_add_u32 v6, s38, v3\nv_xor_b32 v7, 4096, v6')
    for k in range(4): A(f'ds_write_b128 v6, {vr(Y+16+4*k,4)} offset:{k*1024}')
    A(f'''v_lshlrev_b32 v12, 5, v8
    v_lshl_add_u32 v12, v9, 3, v12
    s_lshl_b32 s38, s49, 11
    s_add_u32 s38, s38, s47
    v_add_u32 v12, s38, v12''')
    for k in range(4): A(f'ds_read_b64 {vr(F+2*k,2)}, v12 offset:{512+512*k}')
    A(f'''v_lshrrev_b32 v13, 2, v8
    v_mul_u32_u24 v13, {448*128}, v13
    v_and_b32 v10, 3, v8
    v_lshl_add_u32 v13, v10, 5, v13
    v_lshl_add_u32 v13, v9, 3, v13
    s_lshl_b32 s39, s53, 1
    s_add_u32 s39, s39, s48
    s_mul_i32 s44, s49, 448
    s_add_u32 s44, s44, s39
    s_lshl_b32 s44, s44, 7
    s_add_u32 s44, s44, {FS}
    s_mul_i32 s38, s49, {16*448}
    s_add_u32 s38, s38, s39
    s_lshl_b32 s38, s38, 7
    s_add_u32 s38, s38, {ST}
    s_mul_i32 s40, s23, 28
    s_mul_i32 s41, s54, 7
    s_add_u32 s40, s40, s41
    s_lshl_b32 s40, s40, 7
    s_add_u32 s40, s40, {FH+4*128}
    v_min_u32 v4, 2, v0
    v_lshl_add_u32 v4, v4, 7, s40
    v_add_u32 v2, {112*1024}, v3''')
    async_()
    for k in range(4): A(f'ds_read_b128 {vr(Y+16+4*k,4)}, v7 offset:{k*1024}')
    A('s_waitcnt lgkmcnt(0)')
    for i in range(0,16,2):
        y=Y+i; u=F+i//2; t=F+8
        A(f'''v_pk_add_f32 {vr(y,2)}, {vr(y,2)}, {vr(y+16,2)}
        v_lshlrev_b32 v{t}, 16, v{u}
        v_and_b32 v{t+1}, 0xffff0000, v{u}
        v_cvt_pk_bf16_f32 v{y}, v{y}, v{y+1}
        v_pk_mul_f32 {vr(t,2)}, {vr(t,2)}, s[46:47] op_sel_hi:[1,0]
        v_and_b32 v{y+1}, 0xffff0000, v{y}
        v_lshlrev_b32 v{y}, 16, v{y}
        v_cvt_pk_bf16_f32 v{t}, v{t}, v{t+1}
        v_and_b32 v{t+1}, 0xffff0000, v{t}
        v_lshlrev_b32 v{t}, 16, v{t}
        v_pk_add_f32 {vr(y,2)}, {vr(y,2)}, {vr(t,2)}
        v_cvt_pk_bf16_f32 v{u}, v{y}, v{y+1}''')
    for k in range(4): A(f's_add_u32 s39, s38, {k*4*448*128}\nbuffer_store_dwordx2 {vr(F+2*k,2)}, v13, {WS}, s39 offen sc1')
    poll(A,4,5,False,flag(A,44,6)); A.stamp(10)
    gemm2(A,12,16,160,16,80,10,3,2,11)

def service(A):
    XP=960; XL=65536
    A(f'''SV:
    s_lshl_b32 s21, s21, 2
    s_add_u32 s21, s21, s22
    v_lshrrev_b32 v1, 3, v0
    v_and_b32 v2, 7, v0
    v_mul_u32_u24 v3, 896, v1
    v_lshl_add_u32 v4, v2, 4, v3
    s_lshl_b32 s23, s21, 3
    s_add_u32 s23, s23, s3
    s_mul_i32 s36, s23, {8*896}
    v_bfe_u32 v5, v0, 4, 1
    v_lshlrev_b32 v5, 2, v5
    v_xor_b32 v5, v5, v2
    v_lshl_add_u32 v5, v5, 4, v3
    s_lshl_b32 s37, s3, 5
    s_add_u32 s37, s37, s21
    s_mul_i32 s38, s37, 293
    s_lshr_b32 s38, s38, 11
    s_mul_i32 s39, s38, 7
    s_sub_u32 s39, s37, s39
    s_mul_i32 s40, s38, {64*896}
    s_lshl_b32 s41, s39, 7
    s_add_u32 s40, s40, s41
    s_lshl_b32 s41, s3, 13
    s_waitcnt lgkmcnt(0)
    s_load_dword s20, s[6:7], 0''')
    A.srd(24,4,XB); A.srd(28,12,WB)
    for i in range(7): A(f'buffer_load_dwordx4 {vr(16+4*i,4)}, v4, s[24:27], s36 offen offset:{128*i}')
    for i in range(8): A(f's_add_u32 m0, s41, {1024*i}\ns_add_u32 s42, s40, {8*896*i}\nbuffer_load_dwordx4 v5, s[28:31], s42 offen lds')
    A.srd(16,6,WSZ)
    A(f'''v_bfe_u32 v6, v0, 2, 2
    v_lshrrev_b32 v7, 5, v0
    v_lshl_add_u32 v7, v7, 2, v6
    v_lshl_add_u32 v7, v7, 7, s41
    v_bfe_u32 v8, v0, 4, 1
    v_lshl_add_u32 v7, v8, 5, v7
    v_and_b32 v9, 3, v0
    v_lshl_add_u32 v7, v9, 3, v7
    v_bfe_u32 v10, v0, 3, 1
    v_lshl_add_u32 v12, v10, 6, v7
    v_xor_b32 v13, 64, v12
    v_lshl_or_b32 v8, v8, 2, v9
    v_mul_u32_u24 v8, {8*XP+16}, v8
    v_mul_u32_u24 v6, {XP}, v6
    v_add_u32 v8, v8, v6
    v_lshrrev_b32 v7, 5, v0
    v_lshl_add_u32 v8, v7, 3, v8
    s_mul_i32 s42, s3, 112
    s_add_u32 s42, s42, {XL}
    v_add_u32 v14, s42, v8
    v_mul_u32_u24 v15, {XP}, v1
    v_lshl_add_u32 v15, v2, 4, v15
    s_mul_i32 s42, s3, {8*XP+16}
    s_add_u32 s42, s42, {XL}
    v_add_u32 v15, s42, v15
    v_mov_b32 v6, 0
    v_mov_b32 v7, 0
    s_mov_b32 s42, 0x3f803f80
    s_waitcnt lgkmcnt(0)''')
    nonce(A); A.stamp(1)
    for i in range(7):
        A(f's_waitcnt vmcnt({14-i})')
        for k in range(4): A(f'v_dot2_f32_bf16 v6, v{16+4*i+k}, s42, v6\nv_dot2_f32_bf16 v7, v{16+4*i+k}, v{16+4*i+k}, v7')
    for m in ('quad_perm:[1,0,3,2]','quad_perm:[2,3,0,1]','row_half_mirror'):
        for r in (6,7): A(f'v_add_f32_dpp v{r}, v{r}, v{r} {m} row_mask:0xf bank_mask:0xf')
    A(f'''v_mul_f32 v6, {fh(-1/448)}, v6
    v_mul_f32 v7, {fh(1/448)}, v7
    v_fma_f32 v7, -v6, v6, v7
    v_max_f32 v7, 0, v7
    v_cvt_pk_bf16_f32 v8, v6, v6
    v_and_b32 v6, 0xffff0000, v8''')
    bfr(A,7,7); A(f'v_add_f32 v7, {fh(1e-5)}, v7'); bfr(A,7,7); A('v_sqrt_f32 v7, v7'); bfr(A,10,7)
    A(f'''v_rcp_f32 v7, v10
    v_mov_b32 v11, s20
    v_lshlrev_b32 v3, 4, v1
    v_mul_f32 v9, {hex(NLOG2E)}, v7
    s_lshl_b32 s42, s23, 7
    s_add_u32 s42, s42, {STAT}
    v_cmp_eq_u32 vcc, 0, v2
    s_mov_b64 exec, vcc
    buffer_store_dwordx4 v[8:11], v3, {WS}, s42 offen sc1
    s_mov_b64 exec, -1''')
    A.stamp(2)
    for i in range(7):
        T=44+8*(i&1)
        for k in range(4): A(f'v_lshlrev_b32 v{T+2*k}, 16, v{16+4*i+k}\nv_and_b32 v{T+2*k+1}, 0xffff0000, v{16+4*i+k}')
        for k in range(4): A(f'v_pk_add_f32 {vr(T+2*k,2)}, {vr(T+2*k,2)}, v[6:7] op_sel_hi:[1,0]')
        for k in range(4): A(f'v_cvt_pk_bf16_f32 v{16+4*i+k}, v{T+2*k}, v{T+2*k+1}')
        for k in range(4): A(f'v_lshlrev_b32 v{T+2*k}, 16, v{16+4*i+k}\nv_and_b32 v{T+2*k+1}, 0xffff0000, v{16+4*i+k}')
        for k in range(4): A(f'v_pk_mul_f32 {vr(T+2*k,2)}, {vr(T+2*k,2)}, v[6:7] op_sel:[0,1] op_sel_hi:[1,1]')
        for k in range(4): A(f'v_cvt_pk_bf16_f32 v{16+4*i+k}, v{T+2*k}, v{T+2*k+1}')
        A(f'ds_write_b128 v15, {vr(16+4*i,4)} offset:{128*i}')
    A.stamp(3)
    A(f'''v_lshlrev_b32 v3, 4, v0
    s_mul_i32 s42, s39, 28
    s_add_u32 s42, s42, s38
    s_lshl_b32 s43, s42, 13
    s_add_u32 s43, s43, {WD}
    s_add_u32 s45, s43, 4096
    s_lshl_b32 s44, s42, 7
    s_add_u32 s44, s44, {FW}
    s_waitcnt vmcnt(1)
    s_cmp_ge_u32 s37, 196
    s_cbranch_scc1 SV_1''')
    for s in range(4):
        for di in range(2):
            for p in range(2): A(f'ds_read_b64_tr_b16 {vr(64+8*s+4*di+2*p,2)}, v{12+di} offset:{s*2048+p*1024}')
    for k in range(8): A(f's_waitcnt lgkmcnt({14-2*k})\nbuffer_store_dwordx4 {vr(64+4*k,4)}, v3, {WS}, s{43 if k<4 else 45} offen offset:{1024*(k&3)} sc1')
    A('SV_1:\ns_waitcnt lgkmcnt(0)\ns_barrier'); A.stamp(4)
    for i in range(7):
        for p in range(2): A(f'ds_read_b64_tr_b16 {vr(16+4*i+2*p,2)}, v14 offset:{16*i+4*XP*p}')
    A(f'''v_and_b32 v4, 31, v0
    v_lshlrev_b32 v4, 4, v4
    v_lshrrev_b32 v5, 5, v0
    v_lshl_add_u32 v4, v5, 14, v4
    s_mul_i32 s42, s3, {14*16384}
    s_lshl_b32 s43, s21, 9
    s_add_u32 s42, s42, s43
    s_add_u32 s42, s42, {XT}
    s_lshl_b32 s43, s37, 7
    s_add_u32 s43, s43, {FX}''')
    for i in range(7): A(f's_waitcnt lgkmcnt({12-2*i})\nbuffer_store_dwordx4 {vr(16+4*i,4)}, v4, {WS}, s42 offen sc1\ns_add_u32 s42, s42, 32768')
    A.stamp(5)
    A('s_waitcnt vmcnt(7)\ns_cmp_ge_u32 s37, 196\ns_cbranch_scc1 SV_2'); A(flag(A,44,5)); A('SV_2:'); A.stamp(6)
    A('s_waitcnt vmcnt(0)'); A(flag(A,43,5)); A.stamp(7)
    A(f'''s_cmp_lg_u32 s21, 0
    s_cbranch_scc1 SV_3
    s_and_b32 s42, s3, 3
    v_lshl_add_u32 v4, s42, 6, v0
    v_lshrrev_b32 v5, 4, v4
    v_and_b32 v6, 15, v4
    v_mul_u32_u24 v7, 28, v5
    v_add_u32 v7, v7, v6
    v_lshlrev_b32 v7, 8, v7
    v_add_u32 v7, {FH}, v7
    v_lshl_add_u32 v8, v5, 1, v6
    v_lshlrev_b32 v8, 7, v8
    v_add_u32 v8, {FX-14*128}, v8
    v_cmp_gt_u32 vcc, 14, v6
    v_cndmask_b32 v4, v8, v7, vcc''')
    poll(A,4,5)
    A('s_barrier\ns_cmp_lg_u32 s3, 0\ns_cbranch_scc1 SV_3\ns_mov_b32 s42, 0'); A(flag(A,42,5))
    A('SV_3:'); A.dump(1,8); A('s_endpgm')

def build(prof=False, **kw):
    A=Asm(); A.prof=prof; n=NAME+'_kernel'; A.begin(n); A.stamp0()
    A(f'''s_cmp_ge_u32 s2, 256
    s_cbranch_scc1 KEND
    s_load_dwordx2 s[4:5], s[0:1], 0
    s_load_dwordx2 s[6:7], s[0:1], 120
    s_load_dwordx8 s[8:15], s[0:1], 80
    v_lshrrev_b32 v1, 6, v0
    v_and_b32 v0, 63, v0
    v_readfirstlane_b32 s3, v1
    s_and_b32 s21, s2, 7
    s_lshr_b32 s22, s2, 3
    s_cmp_lt_u32 s22, 4
    s_cbranch_scc1 SV
    s_sub_u32 s22, s22, 4
    s_mul_i32 s53, s21, 28
    s_add_u32 s53, s53, s22
    s_mul_i32 s55, s22, 37
    s_lshr_b32 s55, s55, 8
    s_mul_i32 s56, s55, 7
    s_sub_u32 s52, s22, s56
    s_lshl_b32 s23, s21, 2
    s_add_u32 s23, s23, s55
    s_and_b32 s22, s21, 1
    s_mul_i32 s22, s22, 7
    s_add_u32 s22, s22, s52
    s_lshr_b32 s21, s21, 1
    s_lshl_b32 s21, s21, 2
    s_add_u32 s21, s21, s55
    s_and_b32 s54, s3, 3
    s_cmp_lt_u32 s3, 4
    s_cbranch_scc1 GW
    s_load_dwordx16 s[36:51], s[0:1], 8''')
    awave(A,**kw); final(A,12); A('KEND:\ns_endpgm'); gwave(A); service(A); A('CODEEND:')
    A.end(n,256,102)
    A.launches.append(f'; @launch grid=(256,1,1) block=(512,1,1) lds={LDS}')
    A.lines,tot=haz.fix(A.lines); print('nops',tot,'lines',len(A.lines))
    return A.text()
if __name__=='__main__':
    kw={k:int(v) for k,v in (a.split('=') for a in sys.argv[2:])}
    open(sys.argv[1],'w').write(build(**kw))
```

```python
NAME = 'recurrent_scan__ssm_conv_s4__glu_gated_glu__prompt'
class Asm:
    def __init__(s):
        s.lines = []; s.kernels = []; s.launches = []; s.lab = 0
    def __call__(s, txt):
        for l in txt.split('\n'):
            l = l.strip()
            if l: s.lines.append(('' if l.endswith(':') else '  ') + l)
    def label(s, base='L'):
        s.lab += 1; return f'{base}_{s.lab}'
    def begin(s, name):
        s.lines += ['.text', f'.globl {name}', '.p2align 8', f'.type {name},@function', f'{name}:']
    def end(s, name, vgpr, sgpr=96, accum=None, extra=''):
        if accum is None: accum = (vgpr + 3) // 4 * 4
        s.kernels.append(f'''.section .rodata,"a"
.p2align 6
.amdhsa_kernel {name}
  .amdhsa_next_free_vgpr {vgpr}
  .amdhsa_next_free_sgpr {sgpr}
  .amdhsa_accum_offset {accum}
  .amdhsa_group_segment_fixed_size 0
  .amdhsa_kernarg_size 128
  .amdhsa_user_sgpr_count 2
  .amdhsa_user_sgpr_kernarg_segment_ptr 1
  .amdhsa_system_sgpr_workgroup_id_x 1
{extra}.end_amdhsa_kernel''')
    def launch(s, name, grid, block, lds):
        s.launches.append(f'; @launch kernel={name} grid=({grid},1,1) block=({block},1,1) lds={lds}')
    def text(s):
        return '\n'.join(s.launches + ['.amdgcn_target "amdgcn-amd-amdhsa--gfx950"'] + s.lines + s.kernels) + '\n'
    prof = False
    def stamp(s, i):
        if s.prof: s(f's_memtime s[{64+2*i}:{65+2*i}]')
    en=None; cur=0; names=None
    def st(s,nm):
        if s.prof and (s.en is None or nm in s.en):
            s.cur+=1; s.names.append(nm); s.stamp(s.cur)
    def stamp0(s):
        if s.prof: s('s_memrealtime s[62:63]\ns_memtime s[64:65]')
    def dump(s, kidx, n, wave_sgpr=3, lane='v0'):
        if not s.prof: return
        s('s_waitcnt vmcnt(0)'); s.stamp(n)
        s(f's_memrealtime s[60:61]\ns_load_dwordx2 s[58:59], s[0:1], 120\ns_waitcnt lgkmcnt(0)\ns_mov_b64 exec, 1')
        s(f's_lshl_b32 s61, s2, 4\ns_add_u32 s61, s61, s{wave_sgpr}\ns_lshl_b32 s61, s61, 6\ns_add_u32 s61, s61, {0x2000000+kidx*0x100000}\nv_mov_b32 v1, s61')
        s('v_mov_b32 v2, s62\nglobal_store_dword v1, v2, s[58:59]\nv_mov_b32 v2, s60\nglobal_store_dword v1, v2, s[58:59] offset:4')
        for i in range(1, n+1):
            s(f's_sub_u32 s{64+2*i}, s{64+2*i}, s64\nv_mov_b32 v2, s{64+2*i}\nglobal_store_dword v1, v2, s[58:59] offset:{4+4*i}')
    def srd(s, d, base, nbytes):
        s(f's_mov_b32 s{d}, s{base}\ns_and_b32 s{d+1}, s{base+1}, 0xffff\ns_mov_b32 s{d+2}, {nbytes}\ns_mov_b32 s{d+3}, 0x20000')
def vr(a, n=1): return f'v{a}' if n == 1 else f'v[{a}:{a+n-1}]'
def sr(a, n=1): return f's{a}' if n == 1 else f's[{a}:{a+n-1}]'
def ar(a, n=1): return f'a{a}' if n == 1 else f'a[{a}:{a+n-1}]'
```

```python
import sys, struct; sys.path.insert(0,'work')
from gen import *
import haz
def fh(x): return hex(struct.unpack('<I',struct.pack('<f',x))[0])
XB=2048*896; WB=448*3584
LOG2E=0x3fb8aa3b; NLOG2E=0xbfb8aa3b
FH=0x10000; FW=0x30000; FX=0x38000; FS=0x40000; CSP=0x80000; STAT=0x100000
XT=0x200000; WD=0x400000; ST=0x600000; HH=0x800000; WSZ=0x1000000
KG=98304; KP=240; KW=64*KP; CST=159744; STT=161792; SYNC=KG+224; LDS=163840
TOE=106496; TP=4160; TSZ=4*TP; UO=16384; USZ=4608; KD=49152+16; FZ=0x60000; KSZ=4864; RED=59392; SL=131072
WS='s[16:19]'
SPIN=20000
BL=''
def bfr(A, d, s): A(f'v_cvt_pk_bf16_f32 v{d}, v{s}, v{s}\nv_and_b32 v{d}, 0xffff0000, v{d}')
def interleave(*ls):
    out=[]; ls=[list(l) for l in ls]
    while any(ls):
        for l in ls:
            if l: out.append(l.pop(0))
    return out
def poll(A, va, vt, first_issued=False, mid=''):
    L=A.label('PL'); D=A.label('PD')
    A(f's_mov_b32 s57, 0')
    if not first_issued: A(f'buffer_load_dword v{vt}, v{va}, {WS}, 0 offen sc1')
    A(f's_waitcnt vmcnt(0)\n{mid}\nv_cmp_ne_u32 vcc, s20, v{vt}\ns_cbranch_vccz {D}\n{L}:')
    A(f'buffer_load_dword v{vt}, v{va}, {WS}, 0 offen sc1\ns_add_u32 s57, s57, 1\ns_waitcnt vmcnt(0)\nv_cmp_ne_u32 vcc, s20, v{vt}\ns_cbranch_vccz {D}\ns_cmp_lt_u32 s57, {SPIN}\ns_cbranch_scc1 {L}\n{D}:')
def flag(A, soff, vt):
    return f's_mov_b64 exec, 1\nv_mov_b32 v{vt}, s20\nbuffer_store_dword v{vt}, off, {WS}, s{soff} sc1\ns_mov_b64 exec, -1'
def nonce(A): A('s_mul_i32 s20, s20, 0x9e3779b1\ns_add_u32 s20, s20, 0x7f4a7c15')

def gemm2(A, n, k0, WDR, ACC, HR, vl, vl2, st):
    A(f'''s_mul_i32 s40, s23, {2*112}
    s_mul_i32 s41, s54, 28
    s_add_u32 s40, s40, s41
    s_add_u32 s40, s40, {k0+HH//1024}
    s_add_u32 s41, s40, {n}
    s_add_u32 s42, s40, s36
    s_lshl_b32 s40, s40, 10
    s_lshl_b32 s41, s41, 10
    s_lshl_b32 s42, s42, 10''')
    free=list(HR); loc={}; nxt=[0]
    def ld():
        while free and nxt[0]<n:
            r=free.pop(0); loc[nxt[0]]=r; nxt[0]+=1
            A(f'buffer_load_dwordx4 {vr(r,4)}, v{vl}, {WS}, s42 offen {BL}\nbuffer_load_dwordx4 {vr(r+4,4)}, v{vl2}, {WS}, s42 offen {BL}')
            if nxt[0]<n: A('s_add_u32 s42, s42, 1024\ns_cmp_eq_u32 s42, s41\ns_cselect_b32 s42, s40, s42')
    ld()
    for i in range(n):
        A(f's_waitcnt vmcnt({2*(nxt[0]-1-i)})')
        if i==0: A.stamp(st)
        for ti in range(2):
            for di in range(2):
                a=ACC+16*(2*ti+di)
                A(f'v_mfma_f32_32x32x16_bf16 {vr(a,16)}, {vr(WDR[i]+4*di,4)}, {vr(loc[i]+4*ti,4)}, {"0" if i==0 else vr(a,16)}')
        free.extend([loc[i], WDR[i]]); ld()
def wdloads(A, n, k0, regs, vl, mul, qm):
    A(f'''s_mul_i32 s36, s52, {mul}
    s_lshr_b32 s36, s36, 4
    s_and_b32 s55, s23, 3
    s_mul_i32 s55, s55, {qm}
    s_add_u32 s36, s36, s55
    s_cmp_ge_u32 s36, {n}
    s_cselect_b32 s55, {n}, 0
    s_sub_u32 s36, s36, s55
    s_mul_i32 s96, s52, 112
    s_mul_i32 s97, s54, 28
    s_add_u32 s96, s96, s97
    s_add_u32 s96, s96, {k0+WD//2048}
    s_add_u32 s97, s96, {n}
    s_add_u32 s98, s96, s36
    s_lshl_b32 s96, s96, 11
    s_lshl_b32 s97, s97, 11
    s_lshl_b32 s98, s98, 11''')
    l=[]
    for i in range(n):
        for di in range(2): l.append(f'buffer_load_dwordx4 {vr(regs[i]+4*di,4)}, v{vl}, {WS}, s98 offen offset:{1024*di} {BL}'+('\ns_add_u32 s98, s98, 2048\ns_cmp_eq_u32 s98, s97\ns_cselect_b32 s98, s96, s98' if di and i<n-1 else ''))
    return l

def final(A, st):
    ACC=16; R=96
    A(f'''FINAL:
    v_lshrrev_b32 v1, 3, v0
    v_and_b32 v2, 7, v0
    s_lshr_b32 s36, s23, 4
    s_mul_i32 s36, s36, 448
    s_lshl_b32 s37, s52, 6
    s_lshl_b32 s38, s3, 3
    s_add_u32 s37, s37, s38
    s_add_u32 s36, s36, s37
    s_lshl_b32 s36, s36, 7
    s_add_u32 s36, s36, {FS}
    v_lshl_add_u32 v3, v2, 7, s36
    buffer_load_dword v4, v3, {WS}, 0 offen sc1''')
    A.srd(24,4,XB); A.srd(28,14,XB)
    A(f'''s_lshl_b32 s39, s23, 6
    s_add_u32 s39, s39, s38
    s_mul_i32 s39, s39, 896
    s_lshl_b32 s40, s52, 7
    s_add_u32 s39, s39, s40
    v_mul_u32_u24 v5, 896, v1
    v_lshl_add_u32 v5, v2, 4, v5
    buffer_load_dwordx4 v[80:83], v5, s[24:27], s39 offen
    v_and_b32 v6, 31, v0
    v_lshrrev_b32 v7, 5, v0
    v_and_b32 v8, 1, v0
    v_xor_b32 v7, v7, v8
    v_lshl_or_b32 v7, v7, 3, v2
    v_lshlrev_b32 v7, 4, v7
    v_lshl_or_b32 v7, v6, 8, v7
    s_lshl_b32 s40, s3, 14
    v_add_u32 v7, s40, v7
    s_mul_i32 s40, s23, 448
    s_add_u32 s40, s40, s37
    s_lshl_b32 s40, s40, 7
    s_add_u32 s40, s40, {ST}
    v_lshlrev_b32 v6, 4, v0''')
    for k in range(8): A(f'v_xor_b32 v{88+k}, {16*k}, v7')
    poll(A,3,4,True)
    A(f'buffer_load_dwordx4 v[84:87], v6, {WS}, s40 offen sc1')
    A.stamp(st)
    A('s_barrier')
    for ti in range(2):
        for di in range(2):
            for g in range(4): A(f'ds_write_b128 v{88+4*di+g}, {vr(ACC+16*(2*ti+di)+4*g,4)} offset:{8192*ti}')
    A(f'''s_mul_i32 s40, s3, 1040
    s_add_u32 s40, s40, {SL}
    v_add_u32 v6, s40, v6
    v_and_b32 v8, 1, v1
    v_lshl_or_b32 v8, v8, 3, v1
    v_xor_b32 v8, v8, v2
    v_lshlrev_b32 v8, 4, v8
    v_add_u32 v9, s38, v1
    v_lshl_or_b32 v8, v9, 8, v8
    v_xor_b32 v10, 128, v8
    v_add_u32 v11, 0x10000, v8
    v_add_u32 v12, 0x10000, v10
    v_mul_u32_u24 v13, 1040, v2
    v_lshl_add_u32 v13, v9, 1, v13
    v_add_u32 v13, {SL}, v13
    s_waitcnt vmcnt(0)
    ds_write_b128 v6, v[84:87]
    s_waitcnt lgkmcnt(0)
    s_barrier''')
    A.stamp(st+1)
    for k in range(8):
        for hf in range(2): A(f'ds_read_b128 {vr(R+8*k+4*hf,4)}, v{(8,10,11,12)[2*(k>>2)+hf]} offset:{16384*(k&3)}')
    for k in range(1,8):
        A(f's_waitcnt lgkmcnt({min(15,14-2*k+(8 if k>3 else 0))})')
        for i in range(0,8,2): A(f'v_pk_add_f32 {vr(R+i,2)}, {vr(R+i,2)}, {vr(R+8*k+i,2)}')
        if k==3:
            for e in range(8): A(f'ds_read_u16 v{16+e}, v13 offset:{128*e}')
    T=24
    for i in range(0,8,2): A(f'v_cvt_pk_bf16_f32 v{T+i}, v{R+i}, v{R+i+1}')
    for i in range(0,8,2): A(f'v_lshlrev_b32 v{R+i}, 16, v{T+i}\nv_and_b32 v{R+i+1}, 0xffff0000, v{T+i}')
    for i in range(8): A(f'v_mul_f32 v{T+i}, {hex(NLOG2E)}, v{R+i}')
    for i in range(8): A(f'v_exp_f32 v{T+i}, v{T+i}')
    for i in range(8): A(f'v_add_f32 v{T+i}, 1.0, v{T+i}')
    for i in range(8): A(f'v_rcp_f32 v{T+i}, v{T+i}')
    for i in range(0,8,2): A(f'v_pk_mul_f32 {vr(R+i,2)}, {vr(R+i,2)}, {vr(T+i,2)}')
    A('s_waitcnt lgkmcnt(0)')
    for i in range(8): A(f'v_lshlrev_b32 v{16+i}, 16, v{16+i}')
    for i in range(0,8,2): A(f'v_cvt_pk_bf16_f32 v{T+i}, v{R+i}, v{R+i+1}')
    for i in range(0,8,2): A(f'v_lshlrev_b32 v{R+i}, 16, v{T+i}\nv_and_b32 v{R+i+1}, 0xffff0000, v{T+i}')
    for i in range(0,8,2): A(f'v_pk_mul_f32 {vr(R+i,2)}, {vr(R+i,2)}, {vr(16+i,2)}')
    for i in range(0,8,2): A(f'v_lshlrev_b32 v{16+i}, 16, v{80+i//2}\nv_and_b32 v{17+i}, 0xffff0000, v{80+i//2}')
    for i in range(0,8,2): A(f'v_cvt_pk_bf16_f32 v{T+i}, v{R+i}, v{R+i+1}')
    for i in range(0,8,2): A(f'v_lshlrev_b32 v{R+i}, 16, v{T+i}\nv_and_b32 v{R+i+1}, 0xffff0000, v{T+i}')
    for i in range(0,8,2): A(f'v_pk_add_f32 {vr(R+i,2)}, {vr(R+i,2)}, {vr(16+i,2)}')
    for i in range(0,8,2): A(f'v_cvt_pk_bf16_f32 v{T+i//2}, v{R+i}, v{R+i+1}')
    A(f'buffer_store_dwordx4 {vr(T,4)}, v5, s[28:31], s39 offen')
    A.dump(0,st+2)

def gwave(A, NE=20, gp=1, pk=15):
    A(f"""GW:
    s_setprio {gp}
    s_getpc_b64 s[36:37]
    PCREF:
    s_sub_u32 s36, s36, PCREF-{NAME}_kernel
    s_subb_u32 s37, s37, 0
    v_lshl_add_u32 v2, s3, 6, v0
    v_lshlrev_b32 v2, 7, v2
    v_min_u32 v2, CODEEND-{NAME}_kernel-4, v2
    v_mov_b32 v3, s37
    v_add_co_u32 v2, vcc, s36, v2
    v_addc_co_u32 v3, vcc, 0, v3, vcc
    global_load_dword v208, v[2:3], off
    s_and_b32 s39, s3, 1
    s_waitcnt lgkmcnt(0)
    s_load_dword s20, s[6:7], 0""")
    A.srd(16,6,WSZ)
    A(f"""v_and_b32 v4, 31, v0
    v_lshrrev_b32 v7, 5, v0
    v_bfe_u32 v6, v0, 2, 2
    v_xor_b32 v5, v7, v6
    s_lshl_b32 s40, s39, 12
    v_lshl_add_u32 v10, v4, 6, s40
    v_lshl_add_u32 v8, v5, 4, v10
    v_xor_b32 v9, 32, v8
    v_lshl_add_u32 v5, v7, 3, v6
    v_lshlrev_b32 v5, 8, v5
    v_bfe_u32 v10, v0, 4, 1
    v_lshl_add_u32 v5, v10, 5, v5
    v_and_b32 v3, 3, v0
    v_lshl_add_u32 v5, v3, 3, v5
    v_add_u32 v5, 32768, v5
    s_and_b32 s40, s3, 2
    v_xor_b32 v6, s40, v6
    v_lshl_add_u32 v12, v6, 6, v5
    v_xor_b32 v13, 64, v12
    v_add_u32 v14, 32768, v12
    v_add_u32 v15, 32768, v13
    s_lshl_b32 s40, s40, 8
    s_add_u32 s41, s40, {CST}
    v_lshl_add_u32 v10, v4, 3, s41
    s_lshl_b32 s41, s39, 10
    s_add_u32 s40, s40, s41
    s_add_u32 s41, s41, {STT}
    v_lshl_add_u32 v11, v4, 4, s41
    v_mov_b32 v200, 0x3f803f80
    v_mov_b32 v201, v200
    v_mov_b32 v202, v200
    v_mov_b32 v203, v200
    v_lshlrev_b32 v2, 4, v0
    v_add_u32 v1, {112*1024}, v2
    v_lshlrev_b32 v6, 3, v0
    v_cmp_gt_u32 vcc, 32, v0
    s_and_b32 s43, s21, 3
    s_lshr_b32 s42, s21, 3
    s_lshl_b32 s42, s42, 2
    s_add_u32 s43, s43, s42
    s_bfe_u32 s42, s21, 0x10002
    s_mul_i32 s42, s42, 7
    s_add_u32 s42, s42, s43
    s_lshl_b32 s45, s22, 4
    s_add_u32 s42, s42, s45
    s_lshl_b32 s42, s42, 11
    s_add_u32 s42, s42, s40
    s_add_u32 s42, s42, {CSP}
    s_lshl_b32 s43, s43, 1
    s_add_u32 s43, s43, s39
    s_lshl_b32 s45, s53, 7
    s_add_u32 s45, s45, {FZ}
    s_lshl_b32 s37, s21, 1
    s_add_u32 s37, s37, s39
    s_mul_i32 s44, s37, 28
    s_mul_i32 s37, s37, 224
    s_lshl_b32 s38, s22, 1
    s_lshr_b32 s40, s3, 1
    s_add_u32 s38, s38, s40
    s_add_u32 s44, s44, s38
    s_lshl_b32 s44, s44, 7
    s_add_u32 s44, s44, {FH}
    s_lshl_b32 s38, s38, 2
    s_add_u32 s37, s37, s38
    s_lshl_b32 s37, s37, 10
    s_add_u32 s37, s37, {HH}
    s_add_u32 s38, s37, {112*1024}
    s_mul_i32 s40, s23, 28
    s_mul_i32 s41, s54, 7
    s_add_u32 s40, s40, s41
    s_lshl_b32 s40, s40, 7
    s_add_u32 s40, s40, {FH}
    v_lshl_add_u32 v4, v3, 7, s40""")
    WR=list(range(200,256,8))+list(range(160,192,8))+list(range(128,160,8))+[120]
    wl=wdloads(A,16,0,WR,2,37,4)
    A('s_waitcnt lgkmcnt(0)'); nonce(A)
    FR=16; ACC=64
    def reads(step):
        s,ks=divmod(step,2); o=(s%4)*8192; b=FR+24*(step&1); out=[]
        for ti in range(2): out.append(f'ds_read_b128 {vr(b+4*ti,4)}, v{8+ks} offset:{o+ti*2048}')
        for gu in range(2):
            for fi in range(2):
                for p in range(2): out.append(f'ds_read_b64_tr_b16 {vr(b+8+8*gu+4*fi+2*p,2)}, v{12+2*gu+fi} offset:{o+ks*4096+p*1024}')
        return out
    def mfmas(step):
        b=FR+24*(step&1); out=[]
        for ti in (1,0):
            for fi in (1,0):
                for gu in range(2):
                    a=ACC+16*(4*ti+2*fi+gu)
                    out.append(f'v_mfma_f32_32x32x16_bf16 {vr(a,16)}, {vr(b+8+8*gu+4*fi,4)}, {vr(b+4*ti,4)}, {"0" if step==0 else vr(a,16)}')
        return out
    A.stamp(1); A('s_barrier'); A.stamp(2)
    for r in reads(0): A(r)
    SV=192; nl=[0]
    def wld(): A(wl[nl[0]]); nl[0]+=1
    for step in range(29):
        A('s_waitcnt lgkmcnt(0)')
        nxt=step+1
        if nxt<28 and nxt%2==0:
            A('s_barrier')
            if nxt in (8,16,26): A.stamp(3+(nxt-6)//10)
        if nxt<28: rd=reads(nxt)
        elif nxt==28:
            b=FR; rd=[f'ds_read_b128 {vr(SV+4*ti,4)}, v11 offset:{512*ti}' for ti in range(2)]
            rd+=[f'ds_read_b64 {vr(b+8+8*gu+4*fi,2)}, v10 offset:{1024*gu+256*fi}' for gu in range(2) for fi in range(2)]
            rd+=[f'v_mov_b32 v{b+r}, 0\nv_mov_b32 v{b+r+1}, 0' for r in (2,6,10,14,18,22)]
        else:
            rd=[]
            for ti in range(2): A(f'v_cndmask_b32 v{FR+4*ti}, 0, v{SV+4*ti}, vcc\nv_and_b32 v{FR+4*ti+1}, 0xffff, v{FR+4*ti}')
        for i,m in enumerate(mfmas(step)):
            A(m)
            for r in rd[2*i:2*i+2]: A(r)
            if step>=25 and i in (3,7) and nl[0]<NE: wld()
            if step<14 and i in (5,6):
                gu=i-5; L=A.label('CS'); b=FR+24*(step&1)
                A(f's_cmp_eq_u32 s43, {(step&~1)+gu}\ns_cbranch_scc0 {L}')
                for fi in range(2): A(f'v_mfma_f32_32x32x16_bf16 {vr(224+16*fi,16)}, v[200:203], {vr(b+8+8*gu+4*fi,4)}, {vr(224+16*fi,16) if step&1 else "0"}')
                A(f'{L}:')
            if step==14 and i==5:
                A(f's_cmp_ge_u32 s43, 14\ns_cbranch_scc1 CS_X\nv_cndmask_b32 v204, v240, v224, vcc\nv_mov_b32 v205, s20\nbuffer_store_dwordx2 v[204:205], v6, {WS}, s42 offen sc1\nCS_X:')
            if step==15 and i==5:
                A('s_cmp_lg_u32 s3, 0\ns_cbranch_scc1 CS_Y'); A(flag(A,45,206)); A('CS_Y:')
    A.stamp(6)
    lim=14
    for ti in (1,0):
        S=SV+4*ti
        for fi in (1,0):
            g=ACC+16*(4*ti+2*fi); u=g+16; l=[]
            if pk&8 and fi: A(f'v_mov_b32 v{S}, v{S+1}\nv_mov_b32 v{S+3}, v{S+2}')
            if pk&1:
                for i in range(0,16,2): l.append(f'v_pk_mul_f32 {vr(g+i,2)}, {vr(g+i,2)}, {vr(S,2)}'+('' if pk&8 else ' op_sel:[0,1] op_sel_hi:[1,1]'))
            else:
                for i in range(16): l.append(f'v_mul_f32 v{g+i}, v{g+i}, v{S+1}')
            for i in range(16): l.append(f'v_exp_f32 v{g+i}, v{g+i}')
            if pk&2:
                for i in range(0,16,2): l.append(f'v_pk_fma_f32 {vr(g+i,2)}, {vr(g+i,2)}, {vr(S+2,2)}, {vr(S+2,2)}'+('' if pk&8 else ' op_sel_hi:[1,0,0]'))
            else:
                for i in range(16): l.append(f'v_fma_f32 v{g+i}, v{g+i}, v{S+2}, v{S+2}')
            for i in range(16): l.append(f'v_rcp_f32 v{g+i}, v{g+i}')
            if pk&4:
                for i in range(0,16,2): l.append(f'v_pk_mul_f32 {vr(u+i,2)}, {vr(u+i,2)}, {vr(g+i,2)}')
            else:
                for i in range(16): l.append(f'v_mul_f32 v{u+i}, v{u+i}, v{g+i}')
            for i in range(0,16,2): l.append(f'v_cvt_pk_bf16_f32 v{g+i//2}, v{u+i}, v{u+i+1}')
            for i,x in enumerate(l):
                A(x)
                if i%(len(l)//4)==4 and nl[0]<min(NE,lim): wld()
            for k in range(2): A(f'buffer_store_dwordx4 {vr(g+4*k,4)}, v2, {WS}, s{37+ti} offen offset:{fi*2048+k*1024} sc1')
            lim+=8
    A.stamp(7)
    A('s_setprio 0'); n=32-nl[0]
    while nl[0]<32: wld()
    A.stamp(8)
    A(f's_waitcnt vmcnt({n})'); A(flag(A,44,5)); A.stamp(9)
    poll(A,4,5); A.stamp(10)
    gemm2(A,16,0,WR,16,[80,88,96,104,112,192],2,1,11)
    A('s_branch FINAL')

def kgen_stream():
    out=[]
    for rho in range(2):
        pool=list(range(58,110,2))
        def al(): return pool.pop(0)
        un=(lambda d,s: f'v_and_b32 v{d}, 0xffff0000, v{s}') if rho else (lambda d,s: f'v_lshlrev_b32 v{d}, 16, v{s}')
        P,B,C=48,50,52; NE1,NG,NE16,NB=54,55,56,57; Q=32
        for d,s in ((P,8),(P+1,9),(B,10),(B+1,11),(C,12),(C+1,13)): out.append(un(d,s))
        for r in (P,P+1,B,B+1): out.append(f'v_mul_f32 v{r}, v{r}, v5')
        out+=[f'v_mul_f32 v{P}, {hex(LOG2E)}, v{P}', f'v_mul_f32 v{P+1}, 0.15915494309189535, v{P+1}']
        def cm(z,w,nw):
            o=al(); return o,[f'v_mul_f32 v{o}, v{z}, v{w}', f'v_mul_f32 v{o+1}, v{z}, v{w+1}', f'v_fmac_f32 v{o}, v{z+1}, v{nw}', f'v_fmac_f32 v{o+1}, v{z+1}, v{w}']
        tmp=[]
        def cexp(k):
            o=al(); t=al(); tmp.append(t); src=P; l=[]
            if k!=1: l+=[f'v_mul_f32 v{t}, {fh(k)}, v{P}', f'v_mul_f32 v{t+1}, {fh(k)}, v{P+1}']; src=t
            l+=[f'v_exp_f32 v{t}, v{src}', f'v_fract_f32 v{t+1}, v{src+1}', f'v_cos_f32 v{o}, v{t+1}', f'v_sin_f32 v{o+1}, v{t+1}', f'v_mul_f32 v{o}, v{o}, v{t}', f'v_mul_f32 v{o+1}, v{o+1}, v{t}']
            return o,l
        neg=lambda d,s: f'v_xor_b32 v{d}, 0x80000000, v{s}'
        E8,a=cexp(8.0); G,b=cexp(256.0); E1,c=cexp(1)
        H0,d=cm(C,B,NB)
        out+=interleave(a,b,c,[neg(NB,B+1)]+d)
        E16,a=cm(E8,E8,NB)
        out+=[neg(NB,E8+1),neg(NE1,E1+1),neg(NG,G+1)]+a+[neg(NE16,E16+1)]
        pool+=tmp
        if rho: out.append('s_waitcnt lgkmcnt(0)')
        def put(n,z0,z1,q,ore,oim,sg,fin=False):
            r0,i0=(f'v{z0}',f'{sg}v{z0+1}') if z0 else ('1.0','0')
            l=[f'v_cvt_pk_bf16_f32 v{q+(n&3)}, {r0}, v{z1}', f'v_cvt_pk_bf16_f32 v{q+4+(n&3)}, {i0}, {sg}v{z1+1}']
            if n&3==3 or fin: l+=[f'ds_write_b128 v6, {vr(q,4)} offset:{ore+16*(n>>2)}', f'ds_write_b128 v6, {vr(q+4,4)} offset:{oim+16*(n>>2)}']
            return l
        lo=put(0,0,E8,Q,0,64,''); ze,zo=None,E8; pe=[al(),al()]; po=[al(),al()]
        for n in range(1,16):
            if n==1: ze=E16; a=[]
            else: pool.insert(0,pe[n&1]); ze,a=cm(ze,E16,NE16)
            pool.insert(0,po[n&1]); zo,b=cm(zo,E16,NE16)
            lo+=interleave(a,b)+put(n,ze,zo,Q,0,64,'')
        hh=[]; Hs=[H0]; seq=[H0]
        def hp():
            return put(len(seq)//2-1,seq[-2],seq[-1],Q+8,128,176,'-') if len(seq)%2==0 else []
        for k in range(1,8):
            o,a=cm(Hs[-1],E1,NE1); Hs.append(o); seq.append(o); hh+=a+hp()
        pool+=[Hs[1],Hs[3],Hs[5],Hs[7]]
        for i,p in enumerate((0,2,4,6,0,4,0,4,0,0,0,0,0)):
            o,a=cm(Hs[p],G,NG); pool.append(Hs[p]); Hs[p]=o; seq.append(o); hh+=a+hp()
        hh+=put(10,seq[-1],seq[-1],Q+8,128,176,'-',True)
        i=j=0
        while i<len(lo) or j<len(hh):
            if j>=len(hh) or (i<len(lo) and i*len(hh)<=j*len(lo)): out.append(lo[i]); i+=1
            else: out.append(hh[j]); j+=1
        out.append('s_waitcnt lgkmcnt(0)')
        for e in range(16):
            o=((e&7)+16*(e>>3))*KP; r=128+64*rho+8*(e>>1)+2*(e&1)
            out+=[f'ds_read_b64_tr_b16 {vr(r,2)}, v110 offset:{o}', f'ds_read_b64_tr_b16 {vr(r+4,2)}, v7 offset:{o}']
    return out

def awave(A, LA=3, nseg=11, ap=2, cp=0, nok=0, nod=0, xf=0):
    sy=[0]; A.cur=0; A.names=[]
    def async_():
        sy[0]+=1; L=A.label('AS')
        A(f's_waitcnt lgkmcnt(0)\nv_mov_b32 v1, {sy[0]}\nds_write_b32 v14, v1\n{L}:\nds_read_b32 v1, v15\ns_waitcnt lgkmcnt(0)\nv_cmp_gt_u32 vcc, {sy[0]}, v1\ns_cbranch_vccnz {L}')
    A(f"""AW:
    v_lshrrev_b32 v4, 2, v0
    v_lshrrev_b32 v5, 4, v0
    v_and_b32 v6, 3, v0
    v_xor_b32 v6, v6, v5
    v_mul_u32_u24 v112, 896, v4
    v_lshl_add_u32 v112, v6, 4, v112
    v_add_u32 v113, 14336, v112
    v_and_b32 v6, 15, v0
    v_lshlrev_b32 v7, 2, v5
    v_xor_b32 v6, v6, v7
    v_mul_u32_u24 v114, 3584, v5
    v_lshl_add_u32 v114, v6, 4, v114
    v_add_u32 v115, 14336, v114
    s_mul_i32 s55, s21, {128*896}
    s_mul_i32 s96, s54, 28672
    s_add_u32 s55, s55, s96
    s_lshl_b32 s56, s22, 8
    s_add_u32 s56, s56, s96
    s_lshl_b32 s96, s54, 11
    v_lshl_add_u32 v2, s54, 6, v0
    s_lshl_b32 s97, s53, 10
    v_lshl_add_u32 v3, v2, 2, s97
    s_lshl_b32 s97, s53, 2
    s_bfe_u32 s98, s21, 0x10002
    s_mul_i32 s99, s98, {7*32*3584}
    s_mul_i32 s98, s98, 448
    s_add_u32 s55, s55, s98
    s_add_u32 s56, s56, s99
    s_lshl_b32 s98, s98, 1
    s_lshl_b32 s99, s99, 1
    s_waitcnt lgkmcnt(0)
    s_load_dword s20, s[6:7], 0
    s_load_dword s100, s[48:49], s97
    s_load_dword s101, s[50:51], s97""")
    A.srd(24,4,XB); A.srd(28,8,WB); A.srd(32,10,WB)
    if xf: A('v_lshrrev_b32 v4, 3, v0\nv_and_b32 v6, 7, v0\nv_mul_u32_u24 v112, 896, v4\nv_lshl_add_u32 v112, v6, 4, v112\nv_add_u32 v113, 7168, v112\ns_mul_i32 s55, s21, 114688\ns_mul_i32 s98, s54, 28672\ns_add_u32 s55, s55, s98\ns_mov_b32 s98, 0')
    vm=[]
    def dma(s):
        o=(s%4)*8192; l=[]
        for i in range(2):
            for k,(v,srd,so) in enumerate(((112,24,55),(114,28,56),(114,32,56))):
                l.append((f's_add_u32 m0, s96, {o+32768*k+1024*i}\nbuffer_load_dwordx4 v{v+i}, {sr(srd,4)}, s{so} offen lds',s))
        adv=f's_add_u32 s55, s55, {64 if not xf else (14336 if s%2==0 else (128-14336)&0xffffffff)}\ns_add_u32 s56, s56, {32*3584}'
        if s==6: adv+='\ns_sub_u32 s55, s55, s98\ns_sub_u32 s56, s56, s99'
        l[-1]=(l[-1][0]+'\n'+adv,s)
        return l
    def emit(x):
        if nod and isinstance(x[1],int) and x[1]>3: vm.append(x[1]); return
        A(x[0]); vm.append(x[1])
    def vwait(tag):
        idx=max(i for i,t in enumerate(vm) if t==tag); A(f's_waitcnt vmcnt({len(vm)-1-idx})')
    A.st('a1')
    for x in dma(0): emit(x)
    for i in range(6): emit((f'global_load_dword v{8+i}, v3, s[{36+2*i}:{37+2*i}] nt','p'))
    for x in dma(1): emit(x)
    A.st('a2')
    A.srd(16,6,WSZ)
    A(f"""s_lshr_b32 s36, s54, 1
    s_and_b32 s37, s54, 1
    v_mov_b32 v1, 0
    s_lshl_b32 s38, s54, 2
    s_add_u32 s38, s38, {SYNC}
    v_mov_b32 v14, s38
    v_and_b32 v15, 3, v0
    v_lshlrev_b32 v15, 2, v15
    v_add_u32 v15, {SYNC}, v15
    ds_write_b32 v14, v1
    s_mov_b32 s38, {KD}
    v_lshlrev_b32 v5, 3, v2
    v_sub_u32 v5, 2047, v5
    v_cvt_f32_u32 v5, v5""")
    for e in range(0,12,2):
        A(f"""v_add_f32 v6, {fh(-e)}, v5
        v_add_f32 v7, {fh(-e-1)}, v5
        v_cvt_pk_bf16_f32 v6, v6, v7
        v_and_b32 v7, 0xffff0000, v6
        v_lshlrev_b32 v6, 16, v6
        v_cvt_i32_f32 v6, v6
        v_cvt_i32_f32 v7, v7
        v_lshl_add_u32 v{16+e}, v6, 1, s38
        v_lshl_add_u32 v{17+e}, v7, 1, s38""")
    A(f"""v_lshrrev_b32 v4, 5, v0
    s_mul_i32 s38, s36, {KSZ}
    s_add_u32 s38, s38, {KD}
    v_and_b32 v7, 31, v0
    v_lshl_add_u32 v7, v7, 4, s38
    v_lshl_add_u32 v124, v4, 3, v7
    v_cmp_gt_u32 vcc, 32, v0""")
    h0=[256,258,260,262,1024,1280,1536,1792]; h1=[512,516,768,772,2048,2049,2050,2051]
    for i in range(8): A(f'v_mov_b32 v5, {2*h1[i]}\nv_mov_b32 v6, {2*h0[i]}\nv_cndmask_b32 v5, v5, v6, vcc\nv_add_u32 v{116+i}, v5, v7')
    A(f"""s_and_b32 s38, s2, 7
    s_lshl_b32 s38, s38, 12
    s_add_u32 s38, s38, {FX}
    s_mul_i32 s39, s52, {28*128}
    s_add_u32 s39, s39, {FW-32*128}
    v_min_u32 v27, 59, v0
    v_mov_b32 v5, s38
    v_mov_b32 v6, s39
    v_cndmask_b32 v5, v6, v5, vcc
    v_lshl_add_u32 v27, v27, 7, v5
    v_lshrrev_b32 v5, 1, v2
    v_and_b32 v6, 1, v2
    v_lshlrev_b32 v125, 6, v5
    v_lshl_add_u32 v125, v6, 4, v125
    v_mul_u32_u24 v6, {USZ}, v6
    v_lshl_add_u32 v126, v5, 4, v6
    s_mul_i32 s47, s36, {USZ}
    s_add_u32 s47, s47, {UO}
    v_and_b32 v28, 15, v0
    v_lshrrev_b32 v29, 4, v0
    v_sub_u32 v30, 15, v28
    v_and_b32 v31, 3, v30
    v_mul_u32_u24 v31, {TP}, v31
    v_lshrrev_b32 v30, 2, v30
    v_lshl_add_u32 v30, v30, 3, v31
    v_lshl_add_u32 v30, v29, 4, v30
    s_mul_i32 s38, s36, {TSZ}
    s_lshl_b32 s39, s37, 8
    s_sub_u32 s38, s38, s39
    s_add_u32 s38, s38, {TOE+256}
    v_add_u32 v30, s38, v30
    v_lshlrev_b32 v31, 5, v28
    v_lshl_add_u32 v31, v29, 4, v31
    s_sub_u32 s38, s47, s39
    s_add_u32 s38, s38, {512-32-192}
    v_add_u32 v31, s38, v31
    s_mul_i32 s38, s54, {KW}
    s_add_u32 s38, s38, {KG}
    v_mul_u32_u24 v6, {KP}, v0
    v_add_u32 v6, s38, v6
    v_bfe_u32 v5, v0, 3, 1
    v_lshl_add_u32 v5, v4, 2, v5
    v_mul_u32_u24 v5, {8*KP}, v5
    v_bfe_u32 v7, v0, 4, 1
    v_lshl_add_u32 v5, v7, 5, v5
    v_and_b32 v7, 3, v0
    v_lshl_add_u32 v5, v7, 3, v5
    v_add_u32 v5, s38, v5
    v_bfe_u32 v110, v0, 2, 1
    v_lshl_add_u32 v7, v110, 6, v5
    v_mul_u32_u24 v110, 48, v110
    v_add3_u32 v110, v110, v5, 64
    v_add_u32 v110, 64, v110
    s_waitcnt lgkmcnt(0)
    s_lshl_b32 s38, s36, 4
    s_lshr_b32 s100, s100, s38
    s_lshl_b32 s100, s100, 16
    s_lshr_b32 s101, s101, s38
    s_lshl_b32 s46, s101, 16
    s_mov_b32 s48, s36
    s_mov_b32 s49, s37
    v_mov_b32 v5, {hex(LOG2E)}
    v_mul_f32 v5, s100, v5
    v_exp_f32 v5, v5""")
    bfr(A,5,5); nonce(A)
    vwait(0); A('s_barrier'); A.st('a3')
    ks=kgen_stream()[:(20 if nok else 9999)]; per=-(-len(ks)//nseg); nd=2; print('kgen',len(ks),per)
    for s in range(13):
        dm=[]
        while nd<14 and nd<=s+LA and len(dm)<(12 if s>0 else 6): dm+=dma(nd); nd+=1
        seg=ks[s*per:(s+1)*per]
        if s==0:
            for x in dm[:2]: emit(x)
            dm=dm[2:]; vwait('p')
        gap=max(1,len(seg)//(len(dm)+1)) if dm else 1<<30
        for i,x in enumerate(seg):
            if i%gap==0 and dm: emit(dm.pop(0))
            A(x)
        for x in dm: emit(x)
        if s==11:
            A.st('a4')
            A(f"""s_lshl_b32 s38, s22, 15
            s_add_u32 s38, s38, {CSP}
            v_lshlrev_b32 v8, 3, v2
            s_lshl_b32 s39, s21, 11
            s_add_u32 s39, s39, {STAT}
            v_and_b32 v9, 127, v2
            v_lshlrev_b32 v9, 4, v9
            s_mov_b32 s57, 0""")
            def csl():
                for i in range(14): emit((f's_add_u32 s40, s38, {4096*(i//2)}\n'*(1-i%2)+f'buffer_load_dwordx2 {vr(32+2*i,2)}, v8, {WS}, s40 offen offset:{2048*(i%2)} sc1','c'))
                emit((f'buffer_load_dwordx4 v[60:63], v9, {WS}, s39 offen sc1','c'))
                emit((f'buffer_load_dword v64, v27, {WS}, 0 offen sc1','c'))
            csl()
            A(f"""s_lshr_b32 s41, s53, 1
            s_lshl_b32 s41, s41, 14
            s_and_b32 s42, s53, 1
            s_lshl_b32 s42, s42, 5
            s_add_u32 s41, s41, s42
            s_add_u32 s41, s41, {XT}
            s_add_u32 s42, s41, 8192
            v_lshlrev_b32 v3, 4, v0
            s_mul_i32 s43, s48, 3072
            s_add_u32 s43, s43, {RED}
            v_add_u32 v6, s43, v3
            v_mov_b32 v68, 0
            v_mov_b32 v69, 0
            v_mov_b32 v70, 0
            v_mov_b32 v71, 0
            v_lshl_add_u32 v10, v0, 3, s47
            v_and_b32 v11, 7, v0
            v_mul_u32_u24 v11, {TP}, v11
            v_lshl_add_u32 v11, v4, 4, v11
            v_add_u32 v11, {TOE+4096}, v11
            v_mul_u32_u24 v12, {KSZ}, v4
            v_lshlrev_b32 v13, 4, v2
            v_add_u32 v13, {TOE}, v13""")
        if s==12:
            A('s_branch AC_1\nAC_0:\ns_mov_b64 exec, -1'); csl()
            A('AC_1:\ns_waitcnt vmcnt(0)\ns_add_u32 s57, s57, 1')
            for r in list(range(33,60,2))+[63,64]: A(f'v_cmpx_eq_u32 vcc, s20, v{r}')
            A(f's_nop 1\ns_cmp_eq_u64 exec, -1\ns_cbranch_scc1 AC_2\ns_cmp_lt_u32 s57, {SPIN}\ns_cbranch_scc1 AC_0\ns_mov_b64 exec, -1\nAC_2:')
            A(f'buffer_load_dwordx4 v[96:99], v125, {WS}, s41 offen sc1\nbuffer_load_dwordx4 v[100:103], v125, {WS}, s42 offen sc1')
            for st in (16,8,4,2):
                for r in range(0,st,2):
                    if r+st<28: A(f'v_add_f32 v{32+r}, v{32+r}, v{32+r+st}')
            A(f"""v_add_u32 v9, {STT}, v9
            ds_write_b128 v9, v[60:63]
            v_cvt_pk_bf16_f32 v33, v32, v32
            v_and_b32 v33, 0xffff0000, v33
            v_sub_f32 v34, v32, v33
            v_cvt_pk_bf16_f32 v36, v32, v34
            v_and_b32 v33, 0xffff0000, v36
            v_sub_f32 v34, v34, v33
            v_cvt_pk_bf16_f32 v37, v34, 0
            v_add_u32 v8, {CST}, v8
            ds_write_b64 v8, v[36:37]
            ds_write_b64 v10, v[68:69]
            ds_write_b64 v12, v[68:69] offset:{KD-8}
            s_waitcnt lgkmcnt(0)""")
            A.st('a5')
        else: A.st(f'e{s}'); vwait(s+1)
        A.st(f'f{s}'); A('s_barrier'); A.st(f'g{s}')
    A.st('a6')
    WR=list(range(160,256,8))
    wl=wdloads(A,12,16,WR,3,27,3)
    A(f'ds_write_b128 v11, v[68:71]\ns_setprio {ap}')
    ACC=72
    for k in range(16): A(f'v_mfma_f32_32x32x16_bf16 {vr(ACC,16)}, {vr(128+8*k,4)}, {vr(132+8*k,4)}, {"0" if k==0 else vr(ACC,16)}')
    A('s_cmp_eq_u32 s49, 0\ns_cbranch_scc1 CV_A')
    for k in range(3): A(f'ds_write_b128 v6, {vr(ACC+4*k,4)} offset:{k*1024}')
    A(f'CV_A:\ns_waitcnt vmcnt(0)\nds_write_b128 v126, v[96:99] offset:{UO+512}\nds_write_b128 v126, v[100:103] offset:{UO+512+2048}'); async_(); A.st('b1')
    A('s_cmp_eq_u32 s49, 0\ns_cbranch_scc0 CV_B'); FA=48
    for k in range(3): A(f'ds_read_b128 {vr(FA+4*k,4)}, v6 offset:{k*1024}')
    A('s_waitcnt lgkmcnt(0)')
    for i in range(12): A(f'v_add_f32 v{ACC+i}, v{ACC+i}, v{FA+i}')
    for i in range(0,12,2): A(f'v_cvt_pk_bf16_f32 v{FA+i//2}, v{ACC+i}, v{ACC+i+1}')
    A(f'ds_write_b64 v124, {vr(FA,2)}')
    for i in range(8): A(f'ds_write_b16{"_d16_hi" if i&1 else ""} v{116+i}, v{FA+2+i//2}')
    A('CV_B:')
    async_(); A.st('a7')
    for c in range(2):
        for e in range(11): A(f'ds_read_u16 v{48+12*c+e}, v{16+e} offset:{c*KSZ}')
    for c in range(2):
        A(f's_waitcnt lgkmcnt({11 if c==0 else 4})')
        for sft in range(4):
            r=72+16*c+4*sft
            for k in range(4): A(f'v_lshl_or_b32 v{r+k}, v{49+12*c+2*k+sft}, 16, v{48+12*c+2*k+sft}')
            A(f'ds_write_b128 v13, {vr(r,4)} offset:{c*TSZ+sft*TP}')
    A(f'v_mov_b32 v8, v28\nv_mov_b32 v9, v29\nv_mov_b32 v10, v30\nv_mov_b32 v11, v31')
    async_(); A(f's_setprio {cp}'); A.st('a8')
    Y=16
    seq=[(g,m,b) for g in range(4) for m in range(8) for b in range(m,8)]
    need=[]; last={}
    for i,(g,m,b) in enumerate(seq):
        for f in (('A',g,m),('B',g,b-m)):
            if f not in last: need.append(f)
            last[f]=i
    pool=list(range(48,160,4)); loc={}; iss={}; cnt=[0]; done=-1
    def rd():
        f=need.pop(0); r=pool.pop(0); loc[f]=r
        if f[0]=='A':
            o=(3-f[1])*64+(7-f[2])*512; A(f'ds_read_b64 {vr(r,2)}, v10 offset:{o}\nds_read_b64 {vr(r+2,2)}, v10 offset:{o+8}'); cnt[0]+=2
        else: A(f'ds_read_b128 {vr(r,4)}, v11 offset:{512*f[2]+64*(3-f[1])}'); cnt[0]+=1
        iss[f]=cnt[0]-1
    for _ in range(10): rd()
    for i,(g,m,b) in enumerate(seq):
        fa,fb=('A',g,m),('B',g,b-m)
        k=max(iss[fa],iss[fb])
        if k>done: A(f's_waitcnt lgkmcnt({cnt[0]-1-k})'); done=k
        A(f'v_mfma_f32_16x16x32_bf16 {vr(Y+4*b,4)}, {vr(loc[fa],4)}, {vr(loc[fb],4)}, {"0" if g==0 and m==0 else vr(Y+4*b,4)}')
        for f in (fa,fb):
            if last[f]==i: pool.append(loc[f])
        if i%6==2: A(wl.pop(0))
        elif need and pool and cnt[0]-1-done<13: rd()
    assert not wl
    A.st('a9')
    async_()
    F=48
    A('s_cmp_eq_u32 s49, 0\ns_cbranch_scc1 CV_C')
    for i in range(16): A(f'v_swap_b32 v{Y+i}, v{Y+16+i}')
    A(f'CV_C:\ns_lshl_b32 s38, s54, 12\ns_add_u32 s38, s38, {TOE}\nv_add_u32 v6, s38, v3\nv_xor_b32 v7, 4096, v6')
    for k in range(4): A(f'ds_write_b128 v6, {vr(Y+16+4*k,4)} offset:{k*1024}')
    A(f"""v_lshlrev_b32 v12, 5, v8
    v_lshl_add_u32 v12, v9, 3, v12
    s_lshl_b32 s38, s49, 11
    s_add_u32 s38, s38, s47
    v_add_u32 v12, s38, v12""")
    for k in range(4): A(f'ds_read_b64 {vr(F+2*k,2)}, v12 offset:{512+512*k}')
    A(f"""v_lshrrev_b32 v13, 2, v8
    v_mul_u32_u24 v13, {448*128}, v13
    v_and_b32 v10, 3, v8
    v_lshl_add_u32 v13, v10, 5, v13
    v_lshl_add_u32 v13, v9, 3, v13
    s_lshl_b32 s39, s53, 1
    s_add_u32 s39, s39, s48
    s_mul_i32 s44, s49, 448
    s_add_u32 s44, s44, s39
    s_lshl_b32 s44, s44, 7
    s_add_u32 s44, s44, {FS}
    s_mul_i32 s38, s49, {16*448}
    s_add_u32 s38, s38, s39
    s_lshl_b32 s38, s38, 7
    s_add_u32 s38, s38, {ST}
    s_mul_i32 s40, s23, 28
    s_mul_i32 s41, s54, 7
    s_add_u32 s40, s40, s41
    s_lshl_b32 s40, s40, 7
    s_add_u32 s40, s40, {FH+4*128}
    v_min_u32 v4, 2, v0
    v_lshl_add_u32 v4, v4, 7, s40
    v_add_u32 v2, {112*1024}, v3""")
    async_()
    for k in range(4): A(f'ds_read_b128 {vr(Y+16+4*k,4)}, v7 offset:{k*1024}')
    A('s_waitcnt lgkmcnt(0)')
    for i in range(0,16,2):
        y=Y+i; u=F+i//2; t=F+8
        A(f"""v_pk_add_f32 {vr(y,2)}, {vr(y,2)}, {vr(y+16,2)}
        v_lshlrev_b32 v{t}, 16, v{u}
        v_and_b32 v{t+1}, 0xffff0000, v{u}
        v_cvt_pk_bf16_f32 v{y}, v{y}, v{y+1}
        v_pk_mul_f32 {vr(t,2)}, {vr(t,2)}, s[46:47] op_sel_hi:[1,0]
        v_and_b32 v{y+1}, 0xffff0000, v{y}
        v_lshlrev_b32 v{y}, 16, v{y}
        v_cvt_pk_bf16_f32 v{t}, v{t}, v{t+1}
        v_and_b32 v{t+1}, 0xffff0000, v{t}
        v_lshlrev_b32 v{t}, 16, v{t}
        v_pk_add_f32 {vr(y,2)}, {vr(y,2)}, {vr(t,2)}
        v_cvt_pk_bf16_f32 v{u}, v{y}, v{y+1}""")
    for k in range(4): A(f's_add_u32 s39, s38, {k*4*448*128}\nbuffer_store_dwordx2 {vr(F+2*k,2)}, v13, {WS}, s39 offen sc1')
    A.st('b2')
    poll(A,4,5,False,flag(A,44,6)); A.st('a10')
    print('A stamps',A.names); assert A.cur<=10
    gemm2(A,12,16,WR,16,range(80,160,8),3,2,11)

def service(A):
    XP=960; XL=65536
    A(f'''SV:
    s_lshl_b32 s21, s21, 2
    s_add_u32 s21, s21, s22
    v_lshrrev_b32 v1, 3, v0
    v_and_b32 v2, 7, v0
    v_mul_u32_u24 v3, 896, v1
    v_lshl_add_u32 v4, v2, 4, v3
    s_lshl_b32 s23, s21, 3
    s_add_u32 s23, s23, s3
    s_mul_i32 s36, s23, {8*896}
    v_bfe_u32 v5, v0, 4, 1
    v_lshlrev_b32 v5, 2, v5
    v_xor_b32 v5, v5, v2
    v_lshl_add_u32 v5, v5, 4, v3
    s_lshl_b32 s37, s3, 5
    s_add_u32 s37, s37, s21
    s_mul_i32 s38, s37, 293
    s_lshr_b32 s38, s38, 11
    s_mul_i32 s39, s38, 7
    s_sub_u32 s39, s37, s39
    s_mul_i32 s40, s38, {64*896}
    s_lshl_b32 s41, s39, 7
    s_add_u32 s40, s40, s41
    s_lshl_b32 s41, s3, 13
    s_waitcnt lgkmcnt(0)
    s_load_dword s20, s[6:7], 0''')
    A.srd(24,4,XB); A.srd(28,12,WB)
    for i in range(7): A(f'buffer_load_dwordx4 {vr(16+4*i,4)}, v4, s[24:27], s36 offen offset:{128*i}')
    A.srd(16,6,WSZ)
    A(f'''v_bfe_u32 v6, v0, 2, 2
    v_lshrrev_b32 v7, 5, v0
    v_lshl_add_u32 v7, v7, 2, v6
    v_lshl_add_u32 v7, v7, 7, s41
    v_bfe_u32 v8, v0, 4, 1
    v_lshl_add_u32 v7, v8, 5, v7
    v_and_b32 v9, 3, v0
    v_lshl_add_u32 v7, v9, 3, v7
    v_bfe_u32 v10, v0, 3, 1
    v_lshl_add_u32 v12, v10, 6, v7
    v_xor_b32 v13, 64, v12
    v_lshl_or_b32 v8, v8, 2, v9
    v_mul_u32_u24 v8, {8*XP+16}, v8
    v_mul_u32_u24 v6, {XP}, v6
    v_add_u32 v8, v8, v6
    v_lshrrev_b32 v7, 5, v0
    v_lshl_add_u32 v8, v7, 3, v8
    s_mul_i32 s42, s3, 112
    s_add_u32 s42, s42, {XL}
    v_add_u32 v14, s42, v8
    v_mul_u32_u24 v15, {XP}, v1
    v_lshl_add_u32 v15, v2, 4, v15
    s_mul_i32 s42, s3, {8*XP+16}
    s_add_u32 s42, s42, {XL}
    v_add_u32 v15, s42, v15
    v_mov_b32 v6, 0
    v_mov_b32 v7, 0
    s_mov_b32 s42, 0x3f803f80
    s_waitcnt lgkmcnt(0)''')
    nonce(A); A.stamp(1)
    for i in range(7):
        A(f's_waitcnt vmcnt({6-i})')
        for k in range(4): A(f'v_dot2_f32_bf16 v6, v{16+4*i+k}, s42, v6\nv_dot2_f32_bf16 v7, v{16+4*i+k}, v{16+4*i+k}, v7')
    for m in ('quad_perm:[1,0,3,2]','quad_perm:[2,3,0,1]','row_half_mirror'):
        for r in (6,7): A(f'v_add_f32_dpp v{r}, v{r}, v{r} {m} row_mask:0xf bank_mask:0xf')
    A(f'''v_mul_f32 v6, {fh(-1/448)}, v6
    v_mul_f32 v7, {fh(1/448)}, v7
    v_fma_f32 v7, -v6, v6, v7
    v_max_f32 v7, 0, v7
    v_cvt_pk_bf16_f32 v8, v6, v6
    v_and_b32 v6, 0xffff0000, v8''')
    bfr(A,7,7); A(f'v_add_f32 v7, {fh(1e-5)}, v7'); bfr(A,7,7); A('v_sqrt_f32 v7, v7'); bfr(A,10,7)
    A(f'''v_rcp_f32 v7, v10
    v_mov_b32 v11, s20
    v_mov_b32 v60, v7
    v_lshlrev_b32 v3, 4, v1
    v_mul_f32 v9, {hex(NLOG2E)}, v7
    s_lshl_b32 s42, s23, 7
    s_add_u32 s42, s42, {STAT}
    v_cmp_eq_u32 vcc, 0, v2
    s_mov_b64 exec, vcc
    buffer_store_dwordx4 v[8:11], v3, {WS}, s42 offen sc1
    s_mov_b64 exec, -1''')
    A.stamp(2)
    wdma=[f's_add_u32 m0, s41, {1024*i}\ns_add_u32 s42, s40, {8*896*i}\nbuffer_load_dwordx4 v5, s[28:31], s42 offen lds' for i in range(8)]
    for i in range(7):
        for x in wdma[3*i:3*i+3]: A(x)
        T=44+8*(i&1)
        for k in range(4): A(f'v_lshlrev_b32 v{T+2*k}, 16, v{16+4*i+k}\nv_and_b32 v{T+2*k+1}, 0xffff0000, v{16+4*i+k}')
        for k in range(4): A(f'v_pk_add_f32 {vr(T+2*k,2)}, {vr(T+2*k,2)}, v[6:7] op_sel_hi:[1,0]')
        for k in range(4): A(f'v_cvt_pk_bf16_f32 v{16+4*i+k}, v{T+2*k}, v{T+2*k+1}')
        for k in range(4): A(f'v_lshlrev_b32 v{T+2*k}, 16, v{16+4*i+k}\nv_and_b32 v{T+2*k+1}, 0xffff0000, v{16+4*i+k}')
        for k in range(4): A(f'v_pk_mul_f32 {vr(T+2*k,2)}, {vr(T+2*k,2)}, v[60:61] op_sel_hi:[1,0]')
        for k in range(4): A(f'v_cvt_pk_bf16_f32 v{16+4*i+k}, v{T+2*k}, v{T+2*k+1}')
        A(f'ds_write_b128 v15, {vr(16+4*i,4)} offset:{128*i}')
    A.stamp(3)
    A(f'''v_lshlrev_b32 v3, 4, v0
    s_mul_i32 s42, s39, 28
    s_add_u32 s42, s42, s38
    s_lshl_b32 s43, s42, 13
    s_add_u32 s43, s43, {WD}
    s_add_u32 s45, s43, 4096
    s_lshl_b32 s44, s42, 7
    s_add_u32 s44, s44, {FW}
    s_waitcnt vmcnt(0)
    s_cmp_ge_u32 s37, 196
    s_cbranch_scc1 SV_1''')
    for s in range(4):
        for di in range(2):
            for p in range(2): A(f'ds_read_b64_tr_b16 {vr(64+8*s+4*di+2*p,2)}, v{12+di} offset:{s*2048+p*1024}')
    for k in range(8): A(f's_waitcnt lgkmcnt({14-2*k})\nbuffer_store_dwordx4 {vr(64+4*k,4)}, v3, {WS}, s{43 if k<4 else 45} offen offset:{1024*(k&3)} sc1')
    A('SV_1:\ns_waitcnt lgkmcnt(0)\ns_barrier'); A.stamp(4)
    for i in range(7):
        for p in range(2): A(f'ds_read_b64_tr_b16 {vr(16+4*i+2*p,2)}, v14 offset:{16*i+4*XP*p}')
    A(f'''v_and_b32 v4, 31, v0
    v_lshlrev_b32 v4, 4, v4
    v_lshrrev_b32 v5, 5, v0
    v_lshl_add_u32 v4, v5, 14, v4
    s_mul_i32 s42, s3, {14*16384}
    s_lshl_b32 s43, s21, 9
    s_add_u32 s42, s42, s43
    s_add_u32 s42, s42, {XT}
    s_lshl_b32 s43, s37, 7
    s_add_u32 s43, s43, {FX}''')
    for i in range(7): A(f's_waitcnt lgkmcnt({12-2*i})\nbuffer_store_dwordx4 {vr(16+4*i,4)}, v4, {WS}, s42 offen sc1\ns_add_u32 s42, s42, 32768')
    A.stamp(5)
    A('s_waitcnt vmcnt(7)\ns_cmp_ge_u32 s37, 196\ns_cbranch_scc1 SV_2'); A(flag(A,44,5)); A('SV_2:'); A.stamp(6)
    A('s_waitcnt vmcnt(0)'); A(flag(A,43,5)); A.stamp(7)
    A(f'''s_cmp_lg_u32 s21, 0
    s_cbranch_scc1 SV_3
    s_and_b32 s42, s3, 3
    v_lshl_add_u32 v4, s42, 6, v0
    v_mov_b32 v5, {FZ}
    v_mov_b32 v6, {FX-224*128}
    v_cmp_gt_u32 vcc, 224, v4
    v_cndmask_b32 v5, v6, v5, vcc
    v_lshl_add_u32 v4, v4, 7, v5''')
    poll(A,4,5)
    A('s_barrier\ns_cmp_lg_u32 s3, 0\ns_cbranch_scc1 SV_3\ns_mov_b32 s42, 0'); A(flag(A,42,5))
    A('SV_3:'); A.dump(1,8); A('s_endpgm')

def build(prof=False, en='a2,a3,a4,a5,a6,a7,a8,a9,b2,a10', **kw):
    A=Asm(); A.prof=prof; A.en=en.split(','); n=NAME+'_kernel'; A.begin(n); A.stamp0()
    A(f'''s_cmp_ge_u32 s2, 256
    s_cbranch_scc1 KEND
    s_load_dwordx2 s[4:5], s[0:1], 0
    s_load_dwordx2 s[6:7], s[0:1], 120
    s_load_dwordx8 s[8:15], s[0:1], 80
    v_lshrrev_b32 v1, 6, v0
    v_and_b32 v0, 63, v0
    v_readfirstlane_b32 s3, v1
    s_and_b32 s21, s2, 7
    s_lshr_b32 s22, s2, 3
    s_cmp_lt_u32 s22, 4
    s_cbranch_scc1 SV
    s_sub_u32 s22, s22, 4
    s_mul_i32 s53, s21, 28
    s_add_u32 s53, s53, s22
    s_mul_i32 s55, s22, 37
    s_lshr_b32 s55, s55, 8
    s_mul_i32 s56, s55, 7
    s_sub_u32 s52, s22, s56
    s_lshl_b32 s23, s21, 2
    s_add_u32 s23, s23, s55
    s_and_b32 s22, s21, 1
    s_mul_i32 s22, s22, 7
    s_add_u32 s22, s22, s52
    s_lshr_b32 s21, s21, 1
    s_lshl_b32 s21, s21, 2
    s_add_u32 s21, s21, s55
    s_and_b32 s54, s3, 3
    s_cmp_lt_u32 s3, 4
    s_cbranch_scc1 GW
    s_load_dwordx16 s[36:51], s[0:1], 8''')
    kg={k:kw.pop(k) for k in ('NE','gp','pk') if k in kw}
    awave(A,**kw); final(A,12); A('KEND:\ns_endpgm'); gwave(A,**kg); service(A); A('CODEEND:')
    A.end(n,256,102)
    A.launches.append(f'; @launch grid=(256,1,1) block=(512,1,1) lds={LDS}')
    A.lines,tot=haz.fix(A.lines); print('nops',tot,'lines',len(A.lines))
    return A.text()
if __name__=='__main__':
    kw={k:(int(v) if v.isdigit() else v) for k,v in (a.split('=') for a in sys.argv[2:])}
    open(sys.argv[1],'w').write(build(**kw))
```

```python
import sys, struct; sys.path.insert(0,'work')
from gen import *
import haz
def fh(x): return hex(struct.unpack('<I',struct.pack('<f',x))[0])
XB=2048*896; WB=448*3584
LOG2E=0x3fb8aa3b; NLOG2E=0xbfb8aa3b
FH=0x10000; FW=0x110000; FX=0x38000; FS=0x40000; CSP=0x80000; STAT=0x100000
XT=0x200000; WD=0x400000; ST=0x600000; HH=0x800000; WSZ=0x1000000
KP=272; XR=0; LOA=32768; LP=528; LW=31*LP; MISC=49152; HW=21*LP; GR=98304; LDS=163840
TOE=MISC; TP=4160; TSZ=4*TP; KD=TOE+2*TSZ+16; KSZ=4864; CST=93568; STT=CST+2048; SYNC=STT+2048; SL=KD
UO=16384; USZ=4608; EX=32768; FZ=0x60000
NG=14; NA=28-NG; RR=0; XB13=1; GO=''; ROT=0
WS='s[16:19]'
SPIN=20000
BL=''
def bfr(A, d, s): A(f'v_cvt_pk_bf16_f32 v{d}, v{s}, v{s}\nv_and_b32 v{d}, 0xffff0000, v{d}')
def interleave(*ls):
    out=[]; ls=[list(l) for l in ls]
    while any(ls):
        for l in ls:
            if l: out.append(l.pop(0))
    return out
def poll(A, va, vt, first_issued=False, mid=''):
    L=A.label('PL'); D=A.label('PD')
    A(f's_mov_b32 s57, 0')
    if not first_issued: A(f'buffer_load_dword v{vt}, v{va}, {WS}, 0 offen sc1')
    A(f's_waitcnt vmcnt(0)\n{mid}\nv_cmp_ne_u32 vcc, s20, v{vt}\ns_cbranch_vccz {D}\n{L}:')
    A(f'buffer_load_dword v{vt}, v{va}, {WS}, 0 offen sc1\ns_add_u32 s57, s57, 1\ns_waitcnt vmcnt(0)\nv_cmp_ne_u32 vcc, s20, v{vt}\ns_cbranch_vccz {D}\ns_cmp_lt_u32 s57, {SPIN}\ns_cbranch_scc1 {L}\n{D}:')
def flag(A, soff, vt):
    return f's_mov_b64 exec, 1\nv_mov_b32 v{vt}, s20\nbuffer_store_dword v{vt}, off, {WS}, s{soff} sc1\ns_mov_b64 exec, -1'
def nonce(A): A('s_mul_i32 s20, s20, 0x9e3779b1\ns_add_u32 s20, s20, 0x7f4a7c15')

def gemm2(A, n, k0, WDR, ACC, HR, vl, vl2, st, pre='', mid=None, fl='', lab='', head=0):
    A(f'''s_mul_i32 s40, s23, {2*112}
    s_mul_i32 s41, s54, 28
    s_add_u32 s40, s40, s41
    s_add_u32 s40, s40, {k0+HH//1024}
    s_add_u32 s41, s40, {n}
    s_add_u32 s42, s40, s36
    s_lshl_b32 s40, s40, 10
    s_lshl_b32 s41, s41, 10
    s_lshl_b32 s42, s42, 10''')
    free=list(HR); loc={}; nxt=[0]; q=[]
    def ld():
        while free and nxt[0]<n:
            r=free.pop(0); loc[nxt[0]]=r; q.extend([nxt[0]]*2); nxt[0]+=1
            A(f'buffer_load_dwordx4 {vr(r,4)}, v{vl}, {WS}, s42 offen {BL}\nbuffer_load_dwordx4 {vr(r+4,4)}, v{vl2}, {WS}, s42 offen {BL}')
            if nxt[0]<n: A('s_add_u32 s42, s42, 1024\ns_cmp_eq_u32 s42, s41\ns_cselect_b32 s42, s40, s42')
    ld()
    if pre: A(pre); q.append('p')
    if fl: A(f's_waitcnt vmcnt({len(q)})'); A(fl); q.append('f')
    for i in range(n):
        A(f's_waitcnt vmcnt({len(q)-1-max(j for j,t in enumerate(q) if t==i)})')
        if i==0: A.stamp(st)
        for ti in range(2):
            for di in range(2):
                a=ACC+16*(2*ti+di)
                A(f'v_mfma_f32_32x32x16_bf16 {vr(a,16)}, {vr(WDR[i]+4*di,4)}, {vr(loc[i]+4*ti,4)}, {"0" if i==0 else vr(a,16)}')
        free.extend([loc[i], WDR[i]]); ld()
def wdloads(A, n, k0, regs, vl, mul, qm, R=(55,96,97,98)):
    A(f'''s_mul_i32 s36, s52, {mul}
    s_lshr_b32 s36, s36, 4
    s_and_b32 s{R[0]}, s23, 3
    s_mul_i32 s{R[0]}, s{R[0]}, {qm}
    s_add_u32 s36, s36, s{R[0]}
    s_cmp_ge_u32 s36, {n}
    s_cselect_b32 s{R[0]}, {n}, 0
    s_sub_u32 s36, s36, s{R[0]}
    s_mul_i32 s{R[1]}, s52, 112
    s_mul_i32 s{R[2]}, s54, 28
    s_add_u32 s{R[1]}, s{R[1]}, s{R[2]}
    s_add_u32 s{R[1]}, s{R[1]}, {k0+WD//2048}
    s_add_u32 s{R[2]}, s{R[1]}, {n}
    s_add_u32 s{R[3]}, s{R[1]}, s36
    s_lshl_b32 s{R[1]}, s{R[1]}, 11
    s_lshl_b32 s{R[2]}, s{R[2]}, 11
    s_lshl_b32 s{R[3]}, s{R[3]}, 11''')
    l=[]
    for i in range(n):
        for di in range(2): l.append(f'buffer_load_dwordx4 {vr(regs[i]+4*di,4)}, v{vl}, {WS}, s{R[3]} offen offset:{1024*di} {BL}'+(f'\ns_add_u32 s{R[3]}, s{R[3]}, 2048\ns_cmp_eq_u32 s{R[3]}, s{R[2]}\ns_cselect_b32 s{R[3]}, s{R[1]}, s{R[3]}' if di and i<n-1 else ''))
    return l

def lpoll(A, val, va=15, vt=1):
    L=A.label('AS')
    A(f's_mov_b32 s57, 0\n{L}:\nds_read_b32 v{vt}, v{va}\ns_add_u32 s57, s57, 1\ns_waitcnt lgkmcnt(0)\nv_cmp_gt_u32 vcc, {val}, v{vt}\ns_cbranch_vccz {L}x\ns_cmp_lt_u32 s57, {SPIN*16}\ns_cbranch_scc1 {L}\n{L}x:')
def fin0(A, g):
    ACC=16
    lpoll(A, 1 if g else 4)
    A.srd(24,4,XB); A.srd(28,14,XB)
    A(f'''v_lshrrev_b32 v1, 3, v0
    v_and_b32 v2, 7, v0
    s_lshl_b32 s38, s3, 3
    s_lshl_b32 s39, s23, 6
    s_add_u32 s39, s39, s38
    s_mul_i32 s39, s39, 896
    s_lshl_b32 s40, s52, 7
    s_add_u32 s39, s39, s40
    v_mul_u32_u24 v5, 896, v1
    v_lshl_add_u32 v5, v2, 4, v5
    buffer_load_dwordx4 v[80:83], v5, s[24:27], s39 offen
    v_and_b32 v6, 31, v0
    v_lshrrev_b32 v7, 5, v0
    v_and_b32 v8, 1, v0
    v_xor_b32 v7, v7, v2
    v_lshl_or_b32 v7, v8, 3, v7
    v_lshlrev_b32 v7, 4, v7
    v_lshl_or_b32 v7, v6, 8, v7
    s_lshl_b32 s40, s54, 14''')
    if g: A(f's_add_u32 s40, s40, {GR}')
    A('v_add_u32 v7, s40, v7')
    for k in range(8): A(f'v_xor_b32 v{88+k}, {32*k}, v7')
    for ti in range(2):
        for di in range(2):
            for q in range(4): A(f'ds_write_b128 v{88+4*di+q}, {vr(ACC+16*(2*ti+di)+4*q,4)} offset:{8192*ti}')
def final(A, st):
    R=96
    A(f'''FINAL:
    v_and_b32 v8, 1, v1
    v_lshl_or_b32 v8, v8, 3, v1
    v_xor_b32 v8, v8, v2
    v_lshlrev_b32 v8, 4, v8
    v_add_u32 v9, s38, v1
    v_lshl_or_b32 v8, v9, 8, v8
    v_xor_b32 v10, 128, v8
    v_add_u32 v11, {GR}, v8
    v_add_u32 v12, {GR}, v10
    v_mul_u32_u24 v13, 1040, v2
    v_lshl_add_u32 v13, v9, 1, v13
    v_add_u32 v13, {SL}, v13
    s_waitcnt lgkmcnt(0)''')
    A.stamp(st)
    A('s_barrier')
    A.stamp(st+1)
    for k in range(8):
        for hf in range(2): A(f'ds_read_b128 {vr(R+8*k+4*hf,4)}, v{(8,10,11,12)[2*(k>>2)+hf]} offset:{16384*(k&3)}')
    for k in range(1,8):
        A(f's_waitcnt lgkmcnt({min(15,14-2*k+(8 if k>3 else 0))})')
        for i in range(0,8,2): A(f'v_pk_add_f32 {vr(R+i,2)}, {vr(R+i,2)}, {vr(R+8*k+i,2)}')
        if k==3:
            for e in range(8): A(f'ds_read_u16 v{16+e}, v13 offset:{128*e}')
    T=24
    for i in range(0,8,2): A(f'v_cvt_pk_bf16_f32 v{T+i}, v{R+i//2}, v{R+4+i//2}')
    for i in range(0,8,2): A(f'v_lshlrev_b32 v{R+i}, 16, v{T+i}\nv_and_b32 v{R+i+1}, 0xffff0000, v{T+i}')
    for i in range(8): A(f'v_mul_f32 v{T+i}, {hex(NLOG2E)}, v{R+i}')
    for i in range(8): A(f'v_exp_f32 v{T+i}, v{T+i}')
    for i in range(8): A(f'v_add_f32 v{T+i}, 1.0, v{T+i}')
    for i in range(8): A(f'v_rcp_f32 v{T+i}, v{T+i}')
    for i in range(0,8,2): A(f'v_pk_mul_f32 {vr(R+i,2)}, {vr(R+i,2)}, {vr(T+i,2)}')
    A('s_waitcnt lgkmcnt(0)')
    for i in range(8): A(f'v_lshlrev_b32 v{16+i}, 16, v{16+i}')
    for i in range(0,8,2): A(f'v_cvt_pk_bf16_f32 v{T+i}, v{R+i}, v{R+i+1}')
    for i in range(0,8,2): A(f'v_lshlrev_b32 v{R+i}, 16, v{T+i}\nv_and_b32 v{R+i+1}, 0xffff0000, v{T+i}')
    for i in range(0,8,2): A(f'v_pk_mul_f32 {vr(R+i,2)}, {vr(R+i,2)}, {vr(16+i,2)}')
    A('s_waitcnt vmcnt(0)')
    for i in range(0,8,2): A(f'v_lshlrev_b32 v{16+i}, 16, v{80+i//2}\nv_and_b32 v{17+i}, 0xffff0000, v{80+i//2}')
    for i in range(0,8,2): A(f'v_cvt_pk_bf16_f32 v{T+i}, v{R+i}, v{R+i+1}')
    for i in range(0,8,2): A(f'v_lshlrev_b32 v{R+i}, 16, v{T+i}\nv_and_b32 v{R+i+1}, 0xffff0000, v{T+i}')
    for i in range(0,8,2): A(f'v_pk_add_f32 {vr(R+i,2)}, {vr(R+i,2)}, {vr(16+i,2)}')
    for i in range(0,8,2): A(f'v_cvt_pk_bf16_f32 v{T+i//2}, v{R+i}, v{R+i+1}')
    A(f'buffer_store_dwordx4 {vr(T,4)}, v5, s[28:31], s39 offen')
    A.dump(0,st+2)

ROTC=['s_mov_b32 s59, s21', 's_and_b32 s59, s21, 3\ns_lshl_b32 s59, s59, 2\ns_lshr_b32 s97, s21, 2\ns_or_b32 s59, s59, s97',
 's_and_b32 s59, s21, 1\ns_lshl_b32 s59, s59, 3\ns_lshr_b32 s97, s21, 1\ns_or_b32 s59, s59, s97']
def dmaprep(A):
    A(f"""v_lshrrev_b32 v4, 3, v0
    v_lshrrev_b32 v5, 4, v0
    v_and_b32 v6, 7, v0
    v_xor_b32 v6, v6, v5
    v_mul_u32_u24 v112, 896, v4
    v_lshl_add_u32 v112, v6, 4, v112
    v_xor_b32 v113, 64, v112
    v_add_u32 v113, 7168, v113
    v_and_b32 v6, 15, v0
    v_lshlrev_b32 v7, 2, v5
    v_xor_b32 v6, v6, v7
    v_mul_u32_u24 v114, 3584, v5
    v_lshl_add_u32 v114, v6, 4, v114
    v_add_u32 v115, 14336, v114
    s_mul_i32 s55, s21, {128*896}
    s_mul_i32 s96, s54, 14336
    s_add_u32 s55, s55, s96
    s_lshl_b32 s56, s22, 7
    s_add_u32 s56, s56, s96
    s_lshl_b32 s56, s56, 1
    s_lshl_b32 s96, s54, 11
    s_add_u32 s98, s55, 896
    s_add_u32 s99, s56, {448*3584}
    {ROTC[ROT]}
    s_lshr_b32 s97, s59, 2
    s_lshl_b32 s97, s97, 1
    s_add_u32 s97, s97, {'s52' if RR else 0}
    s_cmp_ge_u32 s97, 7
    s_cselect_b32 s57, 7, 0
    s_sub_u32 s97, s97, s57
    s_lshl_b32 s57, s97, 7
    s_add_u32 s55, s55, s57
    s_mul_i32 s57, s97, {64*3584}
    s_add_u32 s56, s56, s57""")
ADVX='s_add_u32 s55, s55, 128\ns_cmp_eq_u32 s55, s98\ns_cselect_b32 s57, 896, 0\ns_sub_u32 s55, s55, s57'
ADVW=f's_add_u32 s56, s56, {32*3584}\ns_cmp_eq_u32 s56, s99\ns_cselect_b32 s57, {448*3584}, 0\ns_sub_u32 s56, s56, s57'
def dmax(j,h,V=112):
    l=[(f's_add_u32 m0, s96, {XR+(j%3)*16384+8192*h+1024*i}', f'buffer_load_dwordx4 v{V+i}, s[24:27], s{100 if h else 55} offen lds', ('x',j)) for i in range(2)]
    if h: l[0]=(f's_add_u32 s100, s55, {64*896}\n'+l[0][0],)+l[0][1:]; l[1]=(l[1][0],l[1][1]+'\n'+ADVX,l[1][2])
    return l
def dmaw(s,V=112,ks=(1,0)):
    l=[(f's_add_u32 m0, s96, {GR+32768*k+((s+1)%4)*8192+1024*i}', f'buffer_load_dwordx4 v{V+2+i}, {sr(28+4*k,4)}, s56 offen lds', ('w',s)) for k in ks for i in range(2)]
    if l: l[-1]=(l[-1][0],l[-1][1]+'\n'+ADVW,l[-1][2])
    return l
def sched(own,V):
    D={s:[] for s in range(13)}; ks=tuple(k for k in (1,0) if 'gu'[k] in own)
    for s in range(1,11):
        w=dmaw(s+3,V,ks)
        for i,k in enumerate(ks): D[s].append(w[2*i:2*i+2])
    if 'x' in own:
        xs=[dmax(j,h,V) for j in range(2,7) for h in range(2)]
        D[1]+=xs[:2]
        for s in range(2,10): D[s].append(xs[s])
    return D

PR=120; DT=126
def pkc(o,z,w): return [f'v_pk_mul_f32 {vr(o,2)}, {vr(z,2)}, {vr(w,2)}', f'v_pk_mul_f32 {vr(o+2,2)}, {vr(z,2)}, {vr(w+2,2)}', f'v_pk_fma_f32 {vr(o,2)}, {vr(z+2,2)}, {vr(w+2,2)}, {vr(o,2)} neg_lo:[1,0,0] neg_hi:[1,0,0]', f'v_pk_fma_f32 {vr(o+2,2)}, {vr(z+2,2)}, {vr(w,2)}, {vr(o+2,2)}']
def unp(d,n,dt):
    l=[]
    for i in range(2): l+=[f'v_lshlrev_b32 v{d+2*i}, 16, v{n+i}', f'v_and_b32 v{d+2*i+1}, 0xffff0000, v{n+i}']
    if dt: l+=[f'v_pk_mul_f32 {vr(d+2*i,2)}, {vr(d+2*i,2)}, {vr(DT,2)} op_sel_hi:[1,0]' for i in range(2)]
    return l
def cexp(o,t,P,lg):
    l=[f'v_mul_f32 v{t+i}, {hex((0x3e22f983 if i>1 else LOG2E)+(lg<<23))}, v{P+i}' for i in (2,3,0,1)]
    l+=[f'v_fract_f32 v{t+i}, v{t+i}' for i in (2,3)]+[f'v_exp_f32 v{t+i}, v{t+i}' for i in (0,1)]
    l+=[f'v_cos_f32 v{o+i}, v{t+2+i}' for i in (0,1)]+[f'v_sin_f32 v{o+2+i}, v{t+2+i}' for i in (0,1)]
    return l+[f'v_pk_mul_f32 {vr(o+2*i,2)}, {vr(o+2*i,2)}, {vr(t,2)}' for i in range(2)]
def dtcalc(A):
    A(f"""s_lshr_b32 s57, s54, 1
    s_lshl_b32 s57, s57, 4
    s_lshr_b32 s100, s100, s57
    s_lshl_b32 s100, s100, 16
    s_lshr_b32 s101, s101, s57
    v_mov_b32 v{DT}, {hex(LOG2E)}
    v_mul_f32 v{DT}, s100, v{DT}
    v_exp_f32 v{DT}, v{DT}""")
    bfr(A,DT,DT); nonce(A)
def kgen_lo():
    P,T,E=128,132,[0,136,140,144,148]; Q=184
    def put(row,z,q): return [f'v_cvt_pk_bf16_f32 v{q}, v{z}, v{z+1}', f'v_cvt_pk_bf16_f32 v{q+1}, v{z+2}, v{z+3}', f'ds_write_addtid_b32 v{q} offset:{LOA+(row-1)*LP}', f'ds_write_addtid_b32 v{q+1} offset:{LOA+(row-1)*LP+256}']
    out=unp(P,PR,1)+cexp(E[1],T,P,3)+interleave(pkc(E[2],E[1],E[1]),put(1,E[1],Q))+interleave(pkc(E[4],E[2],E[2]),pkc(E[3],E[2],E[1]),put(2,E[2],Q+2))
    ch=[]
    for b in (1,2,3,4):
        l=put(b,E[b],Q+2*b-2) if b>2 else []; z=E[b]
        for n,j in enumerate(range(b+4,32,4)):
            o=152+8*(b-1)+4*(n&1); l+=pkc(o,z,E[4])+put(j,o,Q+2*b-2); z=o
        ch.append(l)
    return out+interleave(*ch)
HQ=48
def kgen_hi():
    P,B,C,T1,T2,E1,G=192,196,200,204,208,216,220; H=[224+4*i for i in range(8)]
    hc=lambda k,z: [f'v_cvt_pk_bf16_f32 v{HQ+k}, v{z}, v{z+1}', f'v_cvt_pk_bf16_f32 v{HQ+21+k}, -v{z+2}, -v{z+3}']
    out=unp(P,PR,1)+interleave(cexp(E1,T1,P,0),cexp(G,T2,P,8),unp(B,PR+2,1)+unp(C,PR+4,0)+pkc(H[0],C,B))
    a=hc(0,H[0]); b=[]; c=[]
    for k in range(1,8): a+=pkc(H[k],H[k-1],E1)+hc(k,H[k])
    z=H[0]
    for n,row in enumerate((8,12,14,16,17,18,19,20)):
        o=192+4*(n&1); b+=pkc(o,z,G)+hc(row,o); z=o
    z=H[4]
    for n,row in enumerate((10,13,15)):
        o=200+4*(n&1); c+=pkc(o,z,G)+hc(row,o); z=o
    d=pkc(208,H[2],G)+hc(9,208)+pkc(212,H[6],G)+hc(11,212)
    return out+interleave(a,b[:30])+interleave(c,d,b[30:])

def gwave(A, gp=1, NE=0, xm=100, gs=0, th=1, gw=8, es=21, tp=0, g2p=0):
    gc=[0]; st0=A.stamp
    def gst(): gc[0]+=1; st0(gc[0])
    if gs: A.stamp=lambda i: st0(i) if i>10 else None
    A(f"""GW:
    s_and_b32 s39, s3, 1""")
    for x in dmax(0,0)+dmax(0,1): A((x[0]+'\n'+x[1]).replace('s100','s58'))
    if tp:
        A(f"""s_cmp_eq_u32 s39, 0
        s_cselect_b32 s40, s28, s32
        s_cselect_b32 s41, s29, s33
        s_mov_b32 s42, s30
        s_mov_b32 s43, s31
        s_and_b32 s44, s21, 3
        s_lshl_b32 s44, s44, 3
        s_lshl_b32 s45, s97, 6
        s_add_u32 s44, s44, s45
        s_add_u32 s44, s44, 32
        v_lshrrev_b32 v4, 4, v0
        v_lshl_add_u32 v4, v4, 5, s44
        v_bfe_u32 v5, v0, 1, 3
        v_add_u32 v4, v4, v5
        v_subrev_u32 v5, 448, v4
        v_min_u32 v4, v4, v5
        v_mul_u32_u24 v4, 3584, v4
        v_and_b32 v5, 1, v0
        v_lshl_add_u32 v4, v5, 7, v4
        s_lshl_b32 s44, s22, 8
        s_cmp_lt_u32 s3, 2
        s_cbranch_scc1 TP_W
        s_mov_b32 s40, s24
        s_mov_b32 s41, s25
        s_mov_b32 s42, s26
        s_add_u32 s45, s97, s3
        s_sub_u32 s45, s45, 1
        s_cmp_ge_u32 s45, 7
        s_cselect_b32 s44, 7, 0
        s_sub_u32 s45, s45, s44
        s_lshl_b32 s45, s45, 7
        s_mul_i32 s44, s21, {128*896}
        s_add_u32 s44, s44, s45
        s_mul_i32 s45, s52, 19
        v_min_u32 v4, 18, v0
        v_add_u32 v4, s45, v4
        v_min_u32 v4, 127, v4
        v_mul_u32_u24 v4, 896, v4
        TP_W:
        buffer_load_dword v209, v4, s[40:43], s44 offen""")
    A.stamp(1)
    pro=f"""v_and_b32 v4, 31, v0
    v_lshrrev_b32 v7, 5, v0
    v_bfe_u32 v6, v0, 1, 3
    v_xor_b32 v5, v7, v6
    s_lshl_b32 s40, s39, 13
    s_add_u32 s40, s40, {XR}
    v_lshl_add_u32 v10, v4, 7, s40
    v_lshl_add_u32 v8, v5, 4, v10
    v_xor_b32 v9, 32, v8
    v_xor_b32 v10, 64, v8
    v_xor_b32 v11, 96, v8
    v_bfe_u32 v6, v0, 2, 2
    v_lshl_add_u32 v5, v7, 3, v6
    v_lshlrev_b32 v5, 8, v5
    v_bfe_u32 v3, v0, 4, 1
    v_lshl_add_u32 v5, v3, 5, v5
    v_and_b32 v3, 3, v0
    v_lshl_add_u32 v5, v3, 3, v5
    v_add_u32 v5, {GR}, v5
    s_and_b32 s40, s3, 2
    v_xor_b32 v6, s40, v6
    v_lshl_add_u32 v12, v6, 6, v5
    v_xor_b32 v13, 64, v12
    v_add_u32 v14, 32768, v12
    v_add_u32 v15, 32768, v13
    s_lshl_b32 s40, s40, 8
    s_add_u32 s41, s40, {CST}
    v_lshl_add_u32 v204, v4, 3, s41
    s_lshl_b32 s41, s39, 10
    s_add_u32 s40, s40, s41
    s_add_u32 s41, s41, {STT}
    v_lshl_add_u32 v205, v4, 4, s41
    v_mov_b32 v200, 0x3f803f80
    v_mov_b32 v201, v200
    v_mov_b32 v202, v200
    v_mov_b32 v203, v200
    v_lshlrev_b32 v2, 4, v0
    v_add_u32 v1, {112*1024}, v2
    v_lshlrev_b32 v6, 3, v0
    v_cmp_gt_u32 vcc, 32, v0
    s_and_b32 s43, s59, 3
    s_mov_b32 s42, s59
    s_cmp_ge_u32 s42, 14
    s_cselect_b32 s43, 32, s43
    s_lshl_b32 s45, s22, 4
    s_add_u32 s42, s42, s45
    s_lshl_b32 s42, s42, 11
    s_add_u32 s42, s42, s40
    s_add_u32 s42, s42, {CSP}
    s_lshl_b32 s43, s43, 1
    s_add_u32 s43, s43, s39
    s_lshl_b32 s45, s53, 7
    s_add_u32 s45, s45, {FZ}
    s_lshl_b32 s37, s21, 1
    s_add_u32 s37, s37, s39
    s_mul_i32 s44, s37, 28
    s_mul_i32 s37, s37, 224
    s_lshl_b32 s38, s22, 1
    s_lshr_b32 s40, s3, 1
    s_add_u32 s38, s38, s40
    s_add_u32 s44, s44, s38
    s_lshl_b32 s44, s44, 7
    s_add_u32 s44, s44, {FH}
    s_lshl_b32 s38, s38, 2
    s_add_u32 s37, s37, s38
    s_lshl_b32 s37, s37, 10
    s_add_u32 s37, s37, {HH}
    s_add_u32 s38, s37, {112*1024}
    s_mul_i32 s40, s23, 28
    s_mul_i32 s41, s54, 7
    s_add_u32 s40, s40, s41
    s_lshl_b32 s40, s40, 7
    s_add_u32 s40, s40, {FH}
    v_min_u32 v3, 6, v0
    v_lshl_add_u32 v4, v3, 7, s40
    s_lshl_b32 s40, s3, 2
    s_add_u32 s40, s40, {SYNC}
    v_mov_b32 v7, s40
    s_mul_i32 s46, s54, {LW}
    s_mov_b32 m0, s46
    s_waitcnt lgkmcnt(0)"""
    A(pro); dtcalc(A)
    WR=list(range(216,256,8))+list(range(128,216,8)); WR=WR[:NG]
    wl=wdloads(A,NG,0,WR,2,16*NG//7,NG//4,(58,59,60,61))
    A('\n'.join([ADVX]+[ADVW]*4+[f'v_mov_b32 v{210+i}, v{112+i}' for i in range(4)]))
    D=sched(GO,210); vm=[]; dq=[]
    A.stamp(2); A(f's_waitcnt vmcnt({4+tp})'); A.stamp(3)
    for x in kgen_lo(): A(x)
    FR=16; ACC=64
    def reads(step):
        s,ks=divmod(step,2); o=((s+1)%4)*8192; b=FR+24*(step&1); out=[]
        for ti in range(2): out.append(f'ds_read_b128 {vr(b+4*ti,4)}, v{8+(step&3)} offset:{(step//4%3)*16384+ti*4096}')
        for gu in range(2):
            for fi in range(2):
                for p in range(2): out.append(f'ds_read_b64_tr_b16 {vr(b+8+8*gu+4*fi+2*p,2)}, v{12+2*gu+fi} offset:{o+ks*4096+p*1024}')
        return out
    def mfmas(step):
        b=FR+24*(step&1); out=[]
        for ti in (1,0):
            for fi in (1,0):
                for gu in range(2):
                    a=ACC+16*(4*ti+2*fi+gu)
                    out.append(f'v_mfma_f32_32x32x16_bf16 {vr(a,16)}, {vr(b+8+8*gu+4*fi,4)}, {vr(b+4*ti,4)}, {"0" if step==0 else vr(a,16)}')
        return out
    A(f's_setprio {gp}\ns_waitcnt vmcnt({tp}) lgkmcnt(0)'); A.stamp(4); A('s_barrier'); A.stamp(5)
    for r in reads(0): A(r)
    SV=192; vd=-1
    for step in range(29):
        if gs and gs<=step<gs+4: gst()
        A('s_waitcnt lgkmcnt(0)')
        if gs and gs<=step<gs+4: gst()
        nxt=step+1
        if nxt<28+XB13 and nxt%2==0:
            idx=[i for i,t in enumerate(vm) if t in (('w',nxt//2),('x',nxt//4))]
            if idx and max(idx)>vd: vd=max(idx); A(f's_waitcnt vmcnt({len(vm)-1-vd})')
            A('s_barrier')
            if gs and gs<=step<gs+4: gst()
        if step==0 or step&1 and nxt<26:
            assert not dq
            dq=sum(D[nxt//2],[]); per=len(dq) if step==0 else (len(dq)+1)//2
        slots=((),(5,),(4,6),(3,5,7),(1,3,5,7))[per]
        if nxt<28: rd=reads(nxt)
        elif nxt==28:
            b=FR; rd=[f'ds_read_b128 {vr(SV+4*ti,4)}, v205 offset:{512*ti}' for ti in range(2)]
            rd+=[f'ds_read_b64 {vr(b+8+8*gu+4*fi,2)}, v204 offset:{1024*gu+256*fi}' for gu in range(2) for fi in range(2)]
            rd+=[f'v_mov_b32 v{b+r}, 0\nv_mov_b32 v{b+r+1}, 0' for r in (2,6,10,14,18,22)]
        else:
            rd=[]
            for ti in range(2): A(f'v_cndmask_b32 v{FR+4*ti}, 0, v{SV+4*ti}, vcc\nv_and_b32 v{FR+4*ti+1}, 0xffff, v{FR+4*ti}')
            rd=[f'v_mov_b32 v{S}, v{S+1}\nv_mov_b32 v{S+3}, v{S+2}' for S in (SV,SV+4)]
        for i,m in enumerate(mfmas(step)):
            if i in slots and dq: A(dq[0][0])
            A(m)
            if i in slots and dq: x=dq.pop(0); A(x[1]); vm.append(x[2])
            for r in rd[2*i:2*i+2]: A(r)
            if step>=es and i==6 and 2*NG-len(wl)<NE: A(wl.pop(0))
            if step<8 and i in (5,6):
                gu=i-5; L=A.label('CS'); b=FR+24*(step&1)
                A(f's_cmp_eq_u32 s43, {(step&~1)+gu}\ns_cbranch_scc0 {L}')
                for fi in range(2): A(f'v_mfma_f32_32x32x16_bf16 {vr(224+16*fi,16)}, v[200:203], {vr(b+8+8*gu+4*fi,4)}, {vr(224+16*fi,16) if step&1 else "0"}')
                A(f'{L}:')
            if step==8 and i==5:
                A(f's_cmp_ge_u32 s43, 14\ns_cbranch_scc1 CS_X\nv_cndmask_b32 v206, v240, v224, vcc\nv_mov_b32 v207, s20\nbuffer_store_dwordx2 v[206:207], v6, {WS}, s42 offen sc1\nCS_X:')
            if step==9 and i==5:
                A('s_cmp_lg_u32 s3, 0\ns_cbranch_scc1 CS_Y'); A(flag(A,45,208)); A('CS_Y:')
    A.stamp(6)
    for ti in (1,0):
        S=SV+4*ti
        for fi in (1,0):
            g=ACC+16*(4*ti+2*fi); u=g+16
            for i in range(0,16,2): A(f'v_pk_mul_f32 {vr(g+i,2)}, {vr(g+i,2)}, {vr(S,2)}')
            for i in range(16): A(f'v_exp_f32 v{g+i}, v{g+i}')
            for i in range(0,16,2): A(f'v_pk_fma_f32 {vr(g+i,2)}, {vr(g+i,2)}, {vr(S+2,2)}, {vr(S+2,2)}')
            for i in range(16): A(f'v_rcp_f32 v{g+i}, v{g+i}')
            for i in range(0,16,2): A(f'v_pk_mul_f32 {vr(u+i,2)}, {vr(u+i,2)}, {vr(g+i,2)}')
            if (ti,fi)==(0,0): A('ds_write_b32 v7, v200')
            for i in range(0,16,2): A(f'v_cvt_pk_bf16_f32 v{g+i//2}, v{u+i}, v{u+i+1}')
            for k in range(2): A(f'buffer_store_dwordx4 {vr(g+4*k,4)}, v2, {WS}, s{37+ti} offen offset:{fi*2048+k*1024} sc1')
    A.stamp(7)
    A(f's_setprio {g2p}\nv_add_u32 v8, 16, v7\nds_read_b32 v5, v8\ns_waitcnt lgkmcnt(0)\nv_cmp_gt_u32 vcc, 2, v5\ns_cbranch_vccz G_F\ns_waitcnt vmcnt(0)'); A(flag(A,44,5)); lpoll(A,2,8,5); A('G_F:')
    for x in wl[:gw]: A(x)
    A(f's_waitcnt vmcnt({gw})'); A(flag(A,44,5)); A.stamp(8)
    for x in wl[gw:]: A(x)
    A(f"""s_lshr_b32 s46, s23, 4
    s_mul_i32 s46, s46, 448
    s_lshl_b32 s47, s52, 6
    s_lshl_b32 s48, s3, 4
    s_add_u32 s47, s47, s48
    s_add_u32 s46, s46, s47
    s_lshl_b32 s46, s46, 7
    s_add_u32 s46, s46, {FS}
    v_and_b32 v3, 15, v0
    v_lshl_add_u32 v3, v3, 7, s46
    s_mul_i32 s46, s23, 448
    s_add_u32 s46, s46, s47
    s_lshl_b32 s46, s46, 7
    s_add_u32 s46, s46, {ST}
    s_mul_i32 s47, s3, 2080
    s_add_u32 s47, s47, {SL}
    v_add_u32 v14, s47, v2
    v_mov_b32 v13, v2
    s_mul_i32 s48, s52, {-(-NA*8//7)}
    v_and_b32 v12, 31, v0
    v_min_u32 v12, {-(-NA*8//7)-1}, v12
    v_add_u32 v12, s48, v12
    v_min_u32 v12, {NA*8-1}, v12
    v_lshlrev_b32 v12, 7, v12
    v_lshrrev_b32 v11, 5, v0
    v_mul_u32_u24 v11, {112*1024}, v11
    v_add_u32 v12, v12, v11
    v_and_b32 v15, 3, v0
    v_lshlrev_b32 v15, 2, v15
    v_add_u32 v15, {SYNC}, v15""")
    A.stamp(9)
    poll(A,4,5); A('v_mov_b32 v5, -1\nds_write_b32 v7, v5'); A.stamp(10)
    gemm2(A,NG,0,WR,16,[r for r in range(80,216,8) if r not in WR],2,1,11,f'buffer_load_dword v11, v12, {WS}, s41 offen' if th else '')
    A.stamp(1); A(f'buffer_load_dword v4, v3, {WS}, 0 offen sc1')
    fin0(A,1); A.stamp(2); poll(A,3,4,True); A.stamp(3)
    A(f"""buffer_load_dwordx4 v[84:87], v13, {WS}, s46 offen sc1
    buffer_load_dwordx4 v[88:91], v13, {WS}, s46 offen offset:1024 sc1
    s_waitcnt vmcnt(1)
    ds_write_b128 v14, v[84:87]
    s_waitcnt vmcnt(0)
    ds_write_b128 v14, v[88:91] offset:1040
    s_branch FINAL""")
    A.stamp=st0

def awave(A, ap=2, cp=0, NW=99, TH=8, wm=90, ew='0,0,2,2,4', stg=0, nok=0, w1=2, rs=3, fs=10, cs=8, ts=11, kd=10, sp=2, h10=0):
    A.cur=0; A.names=[]
    def async_(v,w=1):
        A(f's_waitcnt lgkmcnt(0)\nv_mov_b32 v1, {v}\nds_write_b32 v14, v1')
        if w: lpoll(A,v)
    vm=[]; M0=['s45']
    def emit(g):
        for x in g: A(x[0]+'\n'+x[1]); vm.append(x[2])
        if M0[0]: A(f's_mov_b32 m0, {M0[0]}')
    def vwait(tags):
        idx=[i for i,t in enumerate(vm) if t in tags]
        if idx: A(f's_waitcnt vmcnt({len(vm)-1-max(idx)})')
    L_=lambda t:[x.strip() for x in t.split('\n') if x.strip()]
    A('AW:'); A.st('a0'); M0[0]=None; emit(dmaw(0)+(dmaw(1) if w1==0 else [])); A.st('a1')
    A(ADVX)
    A(f"""s_lshr_b32 s48, s54, 1
    s_and_b32 s49, s54, 1
    v_and_b32 v28, 15, v0
    v_lshrrev_b32 v29, 4, v0
    v_mul_u32_u24 v5, {LP}, v28
    v_lshl_add_u32 v5, v29, 4, v5
    s_mul_i32 s38, s48, {2*LW}
    s_mul_i32 s39, s49, {16*LP}
    s_add_u32 s38, s38, s39
    s_add_u32 s38, s38, {LOA-LP}
    v_add_u32 v37, s38, v5
    s_mul_i32 s45, s54, {HW}
    s_cmp_eq_u32 s49, 0
    s_cselect_b32 s42, 0xfffefffe, -1
    s_mov_b32 s43, s42
    v_lshlrev_b32 v3, 4, v0
    s_cmp_ge_u32 s53, 196
    s_cselect_b32 s38, 196, 0
    s_sub_u32 s38, s53, s38
    s_mul_i32 s39, s38, 293
    s_lshr_b32 s39, s39, 11
    s_mul_i32 s40, s39, 7
    s_sub_u32 s38, s38, s40
    s_lshl_b32 s39, s39, 2
    s_add_u32 s39, s39, s54
    s_mul_i32 s36, s39, {16*896}
    s_lshl_b32 s40, s38, 7
    s_add_u32 s36, s36, s40
    s_add_u32 s37, s36, {8*896}
    s_mul_i32 s38, s38, 112
    s_add_u32 s38, s38, s39
    s_lshl_b32 s41, s38, 11
    s_add_u32 s41, s41, {WD}
    s_lshl_b32 s58, s38, 7
    s_add_u32 s58, s58, {FW}
    v_lshrrev_b32 v4, 5, v0
    v_and_b32 v5, 31, v0
    v_mul_u32_u24 v46, 3584, v4
    v_lshl_add_u32 v46, v5, 2, v46""")
    A.srd(8,12,WB); rl=[('',f'buffer_load_dword v{96+e}, v46, s[8:11], s{36+e//4} offen offset:{896*(e&3)} nt','r') for e in range(8)]
    for k in range(64): A(f'v_mov_b32 v{128+k}, {0 if k&16 else "0x3f803f80"}')
    if w1==1: emit(dmaw(1))
    A('s_waitcnt lgkmcnt(0)')
    dtcalc(A); A('s_lshl_b32 s46, s101, 16')
    A.st('a2'); A(f's_waitcnt vmcnt({len(vm)})'); A.st('a3')
    pd=(dmaw(1) if w1==2 else [])+dmax(1,0)+dmax(1,1)+dmaw(2)+dmaw(3)
    for i,x in enumerate(kgen_hi()):
        if kd and i%kd==0 and pd: emit([pd.pop(0)])
        A(x)
    A.st('a4'); emit(pd)
    A.st('a5'); vwait([('w',0)]); A('s_barrier')
    eo=[128*i+k for i in range(4) for k in range(3)]
    Pg=L_(f"""s_mov_b32 s38, {KD}
    s_lshl_b32 s39, s54, 9
    v_lshl_add_u32 v5, v0, 1, s39
    v_sub_u32 v5, 2047, v5
    v_cvt_f32_u32 v5, v5""")
    for e in range(0,12,2):
        Pg+=L_(f"""v_add_f32 v6, {fh(-eo[e])}, v5
        v_add_f32 v7, {fh(-eo[e+1])}, v5
        v_cvt_pk_bf16_f32 v6, v6, v7
        v_and_b32 v7, 0xffff0000, v6
        v_lshlrev_b32 v6, 16, v6
        v_cvt_i32_f32 v6, v6
        v_cvt_i32_f32 v7, v7
        v_lshl_add_u32 v{16+e}, v6, 1, s38
        v_lshl_add_u32 v{17+e}, v7, 1, s38""")
    Ps=L_(f"""s_lshl_b32 s38, s3, 2
    s_add_u32 s38, s38, {SYNC}
    v_mov_b32 v14, s38
    v_and_b32 v15, 7, v0
    v_lshlrev_b32 v15, 2, v15
    v_add_u32 v15, {SYNC}, v15
    s_mul_i32 s38, s48, {KSZ}
    s_lshl_b32 s39, s49, 8
    s_add_u32 s38, s38, s39
    s_add_u32 s38, s38, {KD}
    v_lshl_add_u32 v7, v28, 4, s38
    v_lshl_add_u32 v36, v29, 11, v7
    v_max_u32 v5, 1, v29
    v_lshlrev_b32 v6, v5, 1
    v_lshlrev_b32 v5, 9, v5
    v_subrev_u32 v5, 512, v5
    v_lshlrev_b32 v8, 3, v29
    v_cmp_gt_u32 vcc, 32, v0
    v_cndmask_b32 v5, v5, v8, vcc
    v_add_u32 v32, v7, v5
    v_add_u32 v33, v32, v6
    v_lshlrev_b32 v8, 1, v6
    v_mov_b32 v9, 512
    v_cmp_gt_u32 vcc, 48, v0
    v_cndmask_b32 v8, v9, v8, vcc
    v_add_u32 v34, v32, v8
    v_add_u32 v35, v33, v8
    v_mul_u32_u24 v5, {LP}, v28
    v_lshl_add_u32 v5, v29, 4, v5
    s_mul_i32 s38, s48, {2*HW}
    s_add_u32 s38, s38, {MISC}
    v_add_u32 v38, s38, v5
    s_and_b32 s38, s2, 7
    s_lshl_b32 s38, s38, 12
    s_add_u32 s38, s38, {FX}
    v_and_b32 v5, 31, v0
    v_lshl_add_u32 v42, v5, 7, s38
    s_lshl_b32 s39, s52, 2
    s_add_u32 s39, s39, s54
    s_mul_i32 s39, s39, {28*128}
    s_add_u32 s39, s39, {FW}
    v_min_u32 v5, 27, v0
    v_lshl_add_u32 v39, v5, 7, s39
    s_lshl_b32 s44, s54, 10
    s_add_u32 s44, s44, 32768
    s_lshl_b32 s50, s22, 15
    s_add_u32 s50, s50, {CSP}
    v_and_b32 v8, 31, v0
    v_lshlrev_b32 v8, 4, v8
    v_lshl_add_u32 v8, s54, 9, v8
    v_lshl_add_u32 v47, v4, 3, v8
    v_add_u32 v47, {CST}, v47
    v_lshl_add_u32 v8, v4, 11, v8
    s_lshl_b32 s51, s21, 11
    s_add_u32 s51, s51, {STAT}
    v_and_b32 v9, 127, v2
    v_lshlrev_b32 v9, 4, v9
    v_mov_b32 v44, 0
    v_mov_b32 v45, 0
    v_mul_u32_u24 v12, {KSZ}, v4
    v_add_u32 v12, {KD-8}, v12""")
    Pc=L_(f"""v_lshrrev_b32 v5, 1, v2
    v_and_b32 v6, 1, v2
    v_lshlrev_b32 v40, 6, v5
    v_lshl_add_u32 v40, v6, 4, v40
    v_mul_u32_u24 v6, {USZ}, v6
    v_lshl_add_u32 v41, v5, 4, v6
    v_add_u32 v41, {UO+512}, v41
    s_mul_i32 s47, s48, {USZ}
    s_add_u32 s47, s47, {UO}
    v_sub_u32 v30, 15, v28
    v_and_b32 v31, 3, v30
    v_mul_u32_u24 v31, {TP}, v31
    v_lshrrev_b32 v30, 2, v30
    v_lshl_add_u32 v30, v30, 3, v31
    v_lshl_add_u32 v30, v29, 4, v30
    s_mul_i32 s38, s48, {TSZ}
    s_lshl_b32 s39, s49, 8
    s_sub_u32 s38, s38, s39
    s_add_u32 s38, s38, {TOE+256}
    v_add_u32 v30, s38, v30
    v_lshlrev_b32 v31, 5, v28
    v_lshl_add_u32 v31, v29, 4, v31
    s_sub_u32 s38, s47, s39
    s_add_u32 s38, s38, {512-32-192}
    v_add_u32 v31, s38, v31
    v_lshl_add_u32 v10, v0, 3, s47
    v_lshrrev_b32 v11, 3, v0
    v_mul_u32_u24 v11, {TP}, v11
    v_and_b32 v5, 7, v0
    v_bfe_u32 v6, v0, 4, 1
    v_sub_u32 v5, v5, v6
    v_lshl_add_u32 v11, v5, 2, v11""")
    KA=120; CS=192
    if XB13: cs=10
    def csl():
        l=[(f's_add_u32 s40, s50, {4096*i}', f'buffer_load_dwordx4 {vr(CS+4*i,4)}, v8, {WS}, s40 offen sc1','c') for i in range(7)]
        return l+[('',f'buffer_load_dwordx4 {vr(CS+28,4)}, v9, {WS}, s51 offen sc1','c')]
    ko=[(sw,pl,q) for sw in range(2) for pl in range(2) for q in range(4)]
    hw=[f'ds_write_addtid_b32 v{HQ+k} offset:{MISC+k%21*LP+k//21*256}' for k in range(42)]
    def hr(n): k,mt=divmod(n,2); sw,pl,q=ko[k]; return f'ds_read_b128 {vr(48+4*(n%16),4)}, v38 offset:{sw*HW+16*mt*LP+pl*256+64*q}'
    def km(n): return f'v_mfma_f32_16x16x32_bf16 {vr(KA+4*(n&1),4)}, {vr(48+4*(n%16),4)}, {vr(128+4*(n//2),4)}, {"0" if n<2 else vr(KA+4*(n&1),4)}'
    def toe(c):
        l=[]
        for i in range(4):
            g=48+12*c+3*i; P=72+2*(i&1)+4*c; o=TOE-32768+c*TSZ+256*i
            l+=[f'v_lshl_or_b32 v{P}, v{g+1}, 16, v{g}', f'v_lshl_or_b32 v{P+1}, v{g+2}, 16, v{g+1}']
            l+=[f'ds_write_addtid_b32 v{P+(k&1)} offset:{o+k*TP-4*(k>>1)}' for k in range(4)]
        return l
    def mix(a,b):
        out=[]; j=0
        for i,x in enumerate(a):
            out.append(x); k=(i+1)*len(b)//len(a); out+=b[j:k]; j=k
        return out
    W=[[] for _ in range(13)]
    W[0]=['s_mov_b64 exec, s[42:43]']+[f'ds_read_b128 {vr(128+4*k,4)}, v37 offset:{sw*LW+pl*256+64*q}' for k,(sw,pl,q) in enumerate(ko)]+['s_mov_b64 exec, -1','D']
    PP=Ps+Pc+Pg
    for i in range(7): W[1+i]=PP[i*len(PP)//7:(i+1)*len(PP)//7]
    W[8]=['ds_write_b32 v15, v44']
    W[10]=hw[:h10]; W[11]=hw[h10:]
    W[12]=[hr(n) for n in range(15)]+[f's_setprio {ap}']+[f's_waitcnt lgkmcnt({min(14,31-n,13 if n>1 else 14-n)})\n'+km(n)+'\n'+(hr(n+14) if 0<n<18 else '') for n in range(32)]+['s_setprio 0']
    sc=[f'v_cvt_pk_bf16_f32 v{72+i}, v{KA+2*i}, v{KA+2*i+1}' for i in range(4)]+[f'ds_write_b16{"_d16_hi" if r&1 else ""} v{32+r}, v{72+r//2}' for r in range(4)]
    sc+=['s_mov_b32 exec_hi, 0\nds_write_b16 v36, v74 offset:2048\ns_mov_b32 exec_lo, 0xffff\nds_write_b16_d16_hi v36, v74 offset:2560\nds_write_b16 v36, v75 offset:3072\nds_write_b16_d16_hi v36, v75 offset:3584\ns_mov_b64 exec, -1','ds_write_b64 v12, v[44:45]']
    ga=[f'ds_read_u16 v{48+12*c+e}, v{16+e} offset:{c*KSZ}' for c in range(2) for e in range(12)]
    if nok: W=[[x for x in w if not x.startswith(('ds_','v_mfma'))] for w in W]
    D=sched([k for k in 'xug' if k not in GO],112)
    WR=list(range(224,256,8))+(list(range(256-8*NA,224,8)) if XB13 else list(range(192,224,8))+list(range(184,256-8*NA-8,-8)))
    ew=[int(x) for x in str(ew).split(',')]; wl=None
    D[0].append(rl)
    c=csl(); D[cs]+=[c[:4]]; D[cs+1]+=[c[4:]]
    D[fs-2].insert(0,[('',f'buffer_load_dword v43, v39, {WS}, 0 offen sc1','f')])
    W.append([]); D[13]=[]; ew.append(0)
    if XB13: ts=13; W[13]=sc
    for s in range(13+XB13):
        M0[0]='s45' if s in (10,11) else None
        if M0[0]: A(f's_mov_b32 m0, {M0[0]}')
        dm=D[s]; seg=W[s]
        if s==fs:
            vwait(['f']); L=A.label('FW'); A(f'v_cmp_ne_u32 vcc, s20, v43\ns_cbranch_vccz {L}'); poll(A,39,43); A(f'{L}:')
        if s==fs:
            wl=wdloads(A,NA,NG,WR,3,16*NA//7,NA//4,(58,59,60,61))
        if s==rs:
            vwait(['r']); A('s_mov_b32 s36, 0x05040100\ns_mov_b32 s37, 0x07060302')
            for di in range(2):
                for i in range(4): A(f'v_perm_b32 v{104+4*di+i}, v{97+2*i}, v{96+2*i}, s{36+di}')
                emit([('',f'buffer_store_dwordx4 {vr(104+4*di,4)}, v3, {WS}, s41 offen offset:{1024*di} sc1','t')])
        if s==rs+2: vwait(['t']); A(flag(A,58,1)); vm.append('g')
        if s==10: dm.append([('',f'buffer_load_dword v43, v42, {WS}, 0 offen sc1','f')])
        if s>=fs: dm+=[[('',wl.pop(0),'d')] for _ in range(ew[s-8])]
        if stg and dm and len(seg)>3:
            seg=[x for x in seg if x!='D']; n=len(seg); g=sum(dm,[]); dm=[]; v0=list(vm)
            for k in range(4):
                L=A.label('SG'); A(f's_cmp_lg_u32 s54, {k}\ns_cbranch_scc1 {L}'); vm[:]=v0; emit(g); A(f'{L}:')
                for x in seg[k*n//3:(k+1)*n//3]: A(x)
            seg=[]
        if 'D' not in seg and dm:
            n=len(seg); seg=list(seg)
            for i in reversed(range(len(dm))): seg.insert(i*n//len(dm),'D')
        for x in seg:
            if x=='D': emit(dm.pop(0))
            else: A(x)
        assert not dm
        if s==ts:
            vwait(['c'])
            A(f's_mov_b32 s57, 0\ns_branch AC_1\nAC_0:\ns_mov_b64 exec, -1')
            for x in csl(): A(x[0]+'\n'+x[1])
            A('s_waitcnt vmcnt(0)\nAC_1:\ns_add_u32 s57, s57, 1')
            for r in list(range(CS+1,CS+28,2))+[CS+31]: A(f'v_cmpx_eq_u32 vcc, s20, v{r}')
            A(f's_nop 1\ns_cmp_eq_u64 exec, -1\ns_cbranch_scc1 AC_2\ns_cmp_lt_u32 s57, {SPIN}\ns_cbranch_scc1 AC_0\ns_mov_b64 exec, -1\nAC_2:')
            for st in (16,8,4):
                for r in range(0,st,2):
                    if r+st<28: A(f'v_add_f32 v{CS+r}, v{CS+r}, v{CS+r+st}')
            A(f'v_permlane32_swap_b32 v{CS}, v{CS+2}\ns_nop 1\nv_add_f32 v{CS}, v{CS}, v{CS+2}')
            A(f"""v_add_u32 v9, {STT}, v9
            ds_write_b128 v9, {vr(CS+28,4)}
            v_cvt_pk_bf16_f32 v90, v{CS}, v{CS}
            v_and_b32 v90, 0xffff0000, v90
            v_sub_f32 v91, v{CS}, v90
            v_cvt_pk_bf16_f32 v92, v{CS}, v91
            v_and_b32 v90, 0xffff0000, v92
            v_sub_f32 v91, v91, v90
            v_cvt_pk_bf16_f32 v93, v91, 0
            ds_write_b64 v47, v[92:93]""")
        A.st(f'e{s}'); vwait([('w',s+1),('x',(s+1)//2)]); A('s_waitcnt lgkmcnt(0)')
        A.st(f'f{s}'); A('s_barrier'); A.st(f'g{s}')
    if not XB13:
        for x in sc: A(x)
    A(f"""s_lshr_b32 s41, s53, 1
    s_lshl_b32 s41, s41, 14
    s_and_b32 s42, s53, 1
    s_lshl_b32 s42, s42, 5
    s_add_u32 s41, s41, s42
    s_add_u32 s41, s41, {XT}
    s_add_u32 s42, s41, 8192
    v_or_b32 v13, 16, v15
    s_mov_b32 m0, s44""")
    if not XB13: async_(1,0)
    vwait(['f']); A('v_cmp_ne_u32 vcc, s20, v43\ns_cbranch_vccz FX_OK'); poll(A,42,43); A('FX_OK:'); A.st('a6')
    A(f'buffer_load_dwordx4 v[96:99], v40, {WS}, s41 offen sc1\nbuffer_load_dwordx4 v[100:103], v40, {WS}, s42 offen sc1')
    n=min(NW,len(wl)); k=0
    for _ in range(2): A(wl.pop(0)); k+=1
    if not XB13: lpoll(A,1,13)
    for x in ga: A(x)
    A(f'ds_write_b64 v10, v[44:45]\nds_write_b32 v11, v44 offset:{TOE+4096}')
    for _ in range(2): A(wl.pop(0)); k+=1
    A('s_waitcnt lgkmcnt(2)'); A.st('a7')
    for i,x in enumerate(toe(0)+toe(1)):
        A(x)
        if i%12==11 and k<n: A(wl.pop(0)); k+=1
    A(f's_waitcnt vmcnt({k})\nds_write_b128 v41, v[96:99]\nds_write_b128 v41, v[100:103] offset:2048')
    while k<n: A(f's_waitcnt vmcnt({TH})'); A(wl.pop(0)); k+=1
    A("""v_mov_b32 v8, v28
    v_mov_b32 v9, v29
    v_mov_b32 v10, v30
    v_mov_b32 v11, v31""")
    A(f"""s_lshl_b32 s38, s54, 12
    s_add_u32 s38, s38, {EX}
    v_add_u32 v6, s38, v3
    v_xor_b32 v7, 4096, v6
    v_lshlrev_b32 v12, 5, v8
    v_lshl_add_u32 v12, v9, 3, v12
    s_lshl_b32 s38, s49, 11
    s_add_u32 s38, s38, s47
    v_add_u32 v12, s38, v12
    v_lshrrev_b32 v13, 2, v8
    v_mul_u32_u24 v13, {448*128}, v13
    v_and_b32 v8, 3, v8
    v_lshl_add_u32 v13, v8, 5, v13
    v_lshl_add_u32 v13, v9, 3, v13
    s_lshl_b32 s39, s53, 1
    s_add_u32 s39, s39, s48
    s_mul_i32 s44, s49, 448
    s_add_u32 s44, s44, s39
    s_lshl_b32 s44, s44, 7
    s_add_u32 s44, s44, {FS}
    s_mul_i32 s38, s49, {16*448}
    s_add_u32 s38, s38, s39
    s_lshl_b32 s38, s38, 7
    s_add_u32 s38, s38, {ST}
    v_subrev_u32 v4, 16, v14
    v_add_u32 v2, {112*1024}, v3""")
    A.st('b1'); async_(2); A(f's_setprio {cp}'); A.st('a8')
    Y=16
    seq=[(g,m,b) for g in range(4) for m in range(8) for b in range(m,8)]
    need=[]; last={}
    for i,(g,m,b) in enumerate(seq):
        for f in (('A',g,m),('B',g,b-m)):
            if f not in last: need.append(f)
            last[f]=i
    pool=list(range(48,256-8*NA,4)); loc={}; iss={}; cnt=[0]; done=-1
    def rd():
        f=need.pop(0); r=pool.pop(0); loc[f]=r
        if f[0]=='A':
            o=(3-f[1])*64+(7-f[2])*512; A(f'ds_read_b64 {vr(r,2)}, v10 offset:{o}\nds_read_b64 {vr(r+2,2)}, v10 offset:{o+8}'); cnt[0]+=2
        else: A(f'ds_read_b128 {vr(r,4)}, v11 offset:{512*f[2]+64*(3-f[1])}'); cnt[0]+=1
        iss[f]=cnt[0]-1
    for _ in range(10): rd()
    for i,(g,m,b) in enumerate(seq):
        fa,fb=('A',g,m),('B',g,b-m)
        k=max(iss[fa],iss[fb])
        if k>done: A(f's_waitcnt lgkmcnt({cnt[0]-1-k})'); done=k
        A(f'v_mfma_f32_16x16x32_bf16 {vr(Y+4*b,4)}, {vr(loc[fa],4)}, {vr(loc[fb],4)}, {"0" if g==0 and m==0 else vr(Y+4*b,4)}')
        for f in (fa,fb):
            if last[f]==i: pool.append(loc[f])
        if need and pool and cnt[0]-1-done<13: rd()
    A.st('a9')
    def sepi():
        F=48
        for k in range(4): A(f'ds_read_b64 {vr(F+2*k,2)}, v12 offset:{512+512*k}')
        L=A.label('CV'); A(f's_cmp_eq_u32 s49, 0\ns_cbranch_scc1 {L}')
        for i in range(16): A(f'v_swap_b32 v{Y+i}, v{Y+16+i}')
        A(f'{L}:')
        for k in range(4): A(f'ds_write_b128 v6, {vr(Y+16+4*k,4)} offset:{k*1024}')
        async_(3)
        for k in range(4): A(f'ds_read_b128 {vr(Y+16+4*k,4)}, v7 offset:{k*1024}')
        T=64
        for i in range(8): A(f'v_lshlrev_b32 v{T+2*i}, 16, v{F+i}\nv_and_b32 v{T+2*i+1}, 0xffff0000, v{F+i}')
        for i in range(16): A(f'v_mul_f32 v{T+i}, s46, v{T+i}')
        for i in range(8): A(f'v_cvt_pk_bf16_f32 v{F+i}, v{T+2*i}, v{T+2*i+1}')
        for i in range(8): A(f'v_lshlrev_b32 v{T+2*i}, 16, v{F+i}\nv_and_b32 v{T+2*i+1}, 0xffff0000, v{F+i}')
        async_(4,0)
        for i in range(16): A(f'v_add_f32 v{Y+i}, v{Y+i}, v{Y+16+i}')
        for i in range(8): A(f'v_cvt_pk_bf16_f32 v{F+i}, v{Y+2*i}, v{Y+2*i+1}')
        for i in range(8): A(f'v_lshlrev_b32 v{Y+2*i}, 16, v{F+i}\nv_and_b32 v{Y+2*i+1}, 0xffff0000, v{F+i}')
        for i in range(16): A(f'v_add_f32 v{Y+i}, v{Y+i}, v{T+i}')
        for i in range(8): A(f'v_cvt_pk_bf16_f32 v{F+i}, v{Y+2*i}, v{Y+2*i+1}')
        for k in range(4): A(f's_add_u32 s39, s38, {k*4*448*128}\nbuffer_store_dwordx2 {vr(F+2*k,2)}, v13, {WS}, s39 offen sc1')
        A.st('b2')
    A(f's_setprio {sp}'); sepi()
    for x in wl: A(x)
    A(f'ds_read_b32 v1, v4\ns_waitcnt lgkmcnt(0)\nv_cmp_ne_u32 vcc, -1, v1\ns_cbranch_vccz A_J\ns_waitcnt vmcnt(0)'); A(flag(A,44,6)); lpoll(A,-1,4); A('A_J:'); A.st('a10')
    gemm2(A,NA,NG,WR,16,range(80,256-8*NA,8),3,2,11,fl=flag(A,44,6)); A.st('b3')
    print('A stamps',A.names); assert A.cur<=10
    fin0(A,0)

def service(A):
    XP=960; XL=65536
    A(f'''SV:
    s_lshl_b32 s21, s21, 2
    s_add_u32 s21, s21, s22
    v_lshrrev_b32 v1, 3, v0
    v_and_b32 v2, 7, v0
    v_mul_u32_u24 v3, 896, v1
    v_lshl_add_u32 v4, v2, 4, v3
    s_lshl_b32 s23, s21, 3
    s_add_u32 s23, s23, s3
    s_mul_i32 s36, s23, {8*896}
    s_lshl_b32 s37, s3, 5
    s_add_u32 s37, s37, s21
    s_waitcnt lgkmcnt(0)
    s_load_dword s20, s[6:7], 0''')
    A.srd(24,4,XB)
    for i in range(7): A(f'buffer_load_dwordx4 {vr(16+4*i,4)}, v4, s[24:27], s36 offen offset:{128*i}')
    A.srd(16,6,WSZ)
    A(f'''v_bfe_u32 v6, v0, 2, 2
    v_bfe_u32 v8, v0, 4, 1
    v_and_b32 v9, 3, v0
    v_lshl_or_b32 v8, v8, 2, v9
    v_mul_u32_u24 v8, {8*XP+16}, v8
    v_mul_u32_u24 v6, {XP}, v6
    v_add_u32 v8, v8, v6
    v_lshrrev_b32 v7, 5, v0
    v_lshl_add_u32 v8, v7, 3, v8
    s_mul_i32 s42, s3, 112
    s_add_u32 s42, s42, {XL}
    v_add_u32 v14, s42, v8
    v_mul_u32_u24 v15, {XP}, v1
    v_lshl_add_u32 v15, v2, 4, v15
    s_mul_i32 s42, s3, {8*XP+16}
    s_add_u32 s42, s42, {XL}
    v_add_u32 v15, s42, v15
    v_mov_b32 v6, 0
    v_mov_b32 v7, 0
    s_mov_b32 s42, 0x3f803f80
    s_waitcnt lgkmcnt(0)''')
    nonce(A); A.stamp(1)
    for i in range(7):
        A(f's_waitcnt vmcnt({6-i})')
        for k in range(4): A(f'v_dot2_f32_bf16 v6, v{16+4*i+k}, s42, v6\nv_dot2_f32_bf16 v7, v{16+4*i+k}, v{16+4*i+k}, v7')
    for m in ('quad_perm:[1,0,3,2]','quad_perm:[2,3,0,1]','row_half_mirror'):
        for r in (6,7): A(f'v_add_f32_dpp v{r}, v{r}, v{r} {m} row_mask:0xf bank_mask:0xf')
    A(f'''v_mul_f32 v6, {fh(-1/448)}, v6
    v_mul_f32 v7, {fh(1/448)}, v7
    v_fma_f32 v7, -v6, v6, v7
    v_max_f32 v7, 0, v7
    v_cvt_pk_bf16_f32 v8, v6, v6
    v_and_b32 v6, 0xffff0000, v8''')
    bfr(A,7,7); A(f'v_add_f32 v7, {fh(1e-5)}, v7'); bfr(A,7,7); A('v_sqrt_f32 v7, v7'); bfr(A,10,7)
    A(f'''v_rcp_f32 v7, v10
    v_mov_b32 v11, s20
    v_mov_b32 v60, v7
    v_lshlrev_b32 v3, 4, v1
    v_mul_f32 v9, {hex(NLOG2E)}, v7
    s_lshl_b32 s42, s23, 7
    s_add_u32 s42, s42, {STAT}
    v_cmp_eq_u32 vcc, 0, v2
    s_mov_b64 exec, vcc
    buffer_store_dwordx4 v[8:11], v3, {WS}, s42 offen sc1
    s_mov_b64 exec, -1''')
    A.stamp(2)
    for i in range(7):
        T=44+8*(i&1)
        for k in range(4): A(f'v_lshlrev_b32 v{T+2*k}, 16, v{16+4*i+k}\nv_and_b32 v{T+2*k+1}, 0xffff0000, v{16+4*i+k}')
        for k in range(4): A(f'v_pk_add_f32 {vr(T+2*k,2)}, {vr(T+2*k,2)}, v[6:7] op_sel_hi:[1,0]')
        for k in range(4): A(f'v_cvt_pk_bf16_f32 v{16+4*i+k}, v{T+2*k}, v{T+2*k+1}')
        for k in range(4): A(f'v_lshlrev_b32 v{T+2*k}, 16, v{16+4*i+k}\nv_and_b32 v{T+2*k+1}, 0xffff0000, v{16+4*i+k}')
        for k in range(4): A(f'v_pk_mul_f32 {vr(T+2*k,2)}, {vr(T+2*k,2)}, v[60:61] op_sel_hi:[1,0]')
        for k in range(4): A(f'v_cvt_pk_bf16_f32 v{16+4*i+k}, v{T+2*k}, v{T+2*k+1}')
        A(f'ds_write_b128 v15, {vr(16+4*i,4)} offset:{128*i}')
    A.stamp(3)
    A('s_waitcnt lgkmcnt(0)\ns_barrier'); A.stamp(4)
    for i in range(7):
        for p in range(2): A(f'ds_read_b64_tr_b16 {vr(16+4*i+2*p,2)}, v14 offset:{16*i+4*XP*p}')
    A(f'''v_and_b32 v4, 31, v0
    v_lshlrev_b32 v4, 4, v4
    v_lshrrev_b32 v5, 5, v0
    v_lshl_add_u32 v4, v5, 14, v4
    s_mul_i32 s42, s3, {14*16384}
    s_lshl_b32 s43, s21, 9
    s_add_u32 s42, s42, s43
    s_add_u32 s42, s42, {XT}
    s_lshl_b32 s46, s37, 7
    s_add_u32 s46, s46, {FX}''')
    for i in range(7): A(f's_waitcnt lgkmcnt({12-2*i})\nbuffer_store_dwordx4 {vr(16+4*i,4)}, v4, {WS}, s42 offen sc1\ns_add_u32 s42, s42, 32768')
    A('s_waitcnt vmcnt(0)'); A(flag(A,46,5)); A.stamp(5)
    A(f'''s_cmp_lg_u32 s21, 0
    s_cbranch_scc1 SV_3
    s_and_b32 s42, s3, 3
    v_lshl_add_u32 v4, s42, 6, v0
    v_mov_b32 v5, {FZ}
    v_mov_b32 v6, {FX-224*128}
    v_cmp_gt_u32 vcc, 224, v4
    v_cndmask_b32 v5, v6, v5, vcc
    v_lshl_add_u32 v4, v4, 7, v5''')
    poll(A,4,5)
    A('s_barrier\ns_cmp_lg_u32 s3, 0\ns_cbranch_scc1 SV_3\ns_mov_b32 s42, 0'); A(flag(A,42,5))
    A('SV_3:'); A.dump(1,6); A('s_endpgm')

def build(prof=False, en='a2,a3,a4,g6,g12,a7,a8,a9,b2,a10', **kw):
    A=Asm(); A.prof=prof; A.en=en.split(','); n=NAME+'_kernel'; A.begin(n); A.stamp0()
    A(f"""s_cmp_ge_u32 s2, 256
    s_cbranch_scc1 KEND
    s_load_dwordx2 s[4:5], s[0:1], 0
    s_load_dwordx2 s[6:7], s[0:1], 120
    s_load_dwordx8 s[8:15], s[0:1], 80
    s_getpc_b64 s[24:25]
    PCREF:
    v_lshlrev_b32 v2, 6, v0
    v_min_u32 v2, CODEEND-PCREF-4, v2
    v_mov_b32 v3, s25
    v_add_co_u32 v2, vcc, s24, v2
    v_addc_co_u32 v3, vcc, 0, v3, vcc
    global_load_dword v127, v[2:3], off
    v_lshrrev_b32 v1, 6, v0
    v_and_b32 v0, 63, v0
    v_readfirstlane_b32 s3, v1
    s_and_b32 s21, s2, 7
    s_lshr_b32 s22, s2, 3
    s_cmp_lt_u32 s22, 4
    s_cbranch_scc1 SV
    s_load_dwordx16 s[36:51], s[0:1], 8
    s_sub_u32 s22, s22, 4
    s_mul_i32 s53, s21, 28
    s_add_u32 s53, s53, s22
    s_mul_i32 s55, s22, 37
    s_lshr_b32 s55, s55, 8
    s_mul_i32 s56, s55, 7
    s_sub_u32 s52, s22, s56
    s_lshl_b32 s23, s21, 2
    s_add_u32 s23, s23, s55
    s_and_b32 s22, s21, 1
    s_mul_i32 s22, s22, 7
    s_add_u32 s22, s22, s52
    s_lshr_b32 s21, s21, 1
    s_lshl_b32 s21, s21, 2
    s_add_u32 s21, s21, s55
    s_and_b32 s54, s3, 3""")
    dmaprep(A)
    A(f"""v_lshl_add_u32 v2, s54, 6, v0
    s_lshl_b32 s57, s53, 10
    v_lshl_add_u32 v3, v2, 2, s57
    s_lshl_b32 s57, s53, 2
    s_mov_b32 s26, {XB}
    s_mov_b32 s27, 0x20000
    s_mov_b32 s30, {WB}
    s_mov_b32 s31, 0x20000
    s_mov_b32 s34, {WB}
    s_mov_b32 s35, 0x20000
    s_mov_b32 s18, {WSZ}
    s_mov_b32 s19, 0x20000
    s_cmp_lt_u32 s3, 4
    s_waitcnt lgkmcnt(0)
    global_load_dword v{PR}, v3, s[36:37] nt
    global_load_dword v{PR+1}, v3, s[38:39] nt
    s_cbranch_scc1 P_G""")
    for i in range(2,6): A(f'global_load_dword v{PR+i}, v3, s[{36+2*i}:{37+2*i}] nt')
    A(f"""P_G:
    s_load_dword s100, s[48:49], s57
    s_load_dword s101, s[50:51], s57
    s_load_dword s20, s[6:7], 0
    s_mov_b32 s24, s4
    s_and_b32 s25, s5, 0xffff
    s_mov_b32 s28, s8
    s_and_b32 s29, s9, 0xffff
    s_mov_b32 s32, s10
    s_and_b32 s33, s11, 0xffff
    s_mov_b32 s16, s6
    s_and_b32 s17, s7, 0xffff
    s_cmp_lt_u32 s3, 4
    s_cbranch_scc1 GW""")
    kg={k:kw.pop(k) for k in ('gp','NE','xm','gs','th','gw','es','tp','g2p') if k in kw}
    awave(A,**kw); final(A,12); A('KEND:\ns_endpgm'); gwave(A,**kg); service(A); A('CODEEND:')
    A.end(n,256,102)
    A.launches.append(f'; @launch grid=(256,1,1) block=(512,1,1) lds={LDS}')
    A.lines,tot=haz.fix(A.lines); print('nops',tot,'lines',len(A.lines))
    return A.text()
if __name__=='__main__':
    kw={k:(int(v) if v.isdigit() else v) for k,v in (a.split('=') for a in sys.argv[2:])}
    for k in ('NG','RR','GO','ROT','XB13'):
        if k in kw: globals()[k]=kw.pop(k)
    NA=28-NG
    open(sys.argv[1],'w').write(build(**kw))
```

```python
import sys, struct; sys.path.insert(0,'work')
from gen import *
import haz
def fh(x): return hex(struct.unpack('<I',struct.pack('<f',x))[0])
XB=2048*896; WB=448*3584
LOG2E=0x3fb8aa3b; NLOG2E=0xbfb8aa3b
FH=0x10000; FW=0x110000; FX=0x38000; FS=0x40000; CSP=0x80000; STAT=0x100000
XT=0x200000; WD=0x400000; ST=0x600000; HH=0x800000; WSZ=0x1000000
KP=272; XR=0; LOA=32768; LP=528; LW=31*LP; MISC=49152; HW=21*LP; GR=98304; LDS=163840
TOE=MISC; TP=4160; TSZ=4*TP; KD=TOE+2*TSZ+16; KSZ=4864; CST=93568; STT=CST+2048; SYNC=STT+2048; SL=KD
UO=16384; USZ=4608; EX=32768; FZ=0x60000
NG=14; NA=28-NG; RR=0; XB13=0; GO=''; ROT=0; KD=32768+16
PRE=1; NR=8; PG=6; PA=5
V1,V2,V3,V4,V5,V6=1,2,3,4,5,6
WS='s[16:19]'
SPIN=20000
BL=''
def bfr(A, d, s): A(f'v_cvt_pk_bf16_f32 v{d}, v{s}, v{s}\nv_and_b32 v{d}, 0xffff0000, v{d}')
def interleave(*ls):
    out=[]; ls=[list(l) for l in ls]
    while any(ls):
        for l in ls:
            if l: out.append(l.pop(0))
    return out
def poll(A, va, vt, first_issued=False, mid=''):
    L=A.label('PL'); D=A.label('PD')
    A(f's_mov_b32 s57, 0')
    if not first_issued: A(f'buffer_load_dword v{vt}, v{va}, {WS}, 0 offen sc1')
    A(f's_waitcnt vmcnt(0)\n{mid}\nv_cmp_ne_u32 vcc, s20, v{vt}\ns_cbranch_vccz {D}\n{L}:')
    A(f'buffer_load_dword v{vt}, v{va}, {WS}, 0 offen sc1\ns_add_u32 s57, s57, 1\ns_waitcnt vmcnt(0)\nv_cmp_ne_u32 vcc, s20, v{vt}\ns_cbranch_vccz {D}\ns_cmp_lt_u32 s57, {SPIN}\ns_cbranch_scc1 {L}\n{D}:')
def flag(A, soff, vt):
    return f's_mov_b64 exec, 1\nv_mov_b32 v{vt}, s20\nbuffer_store_dword v{vt}, off, {WS}, s{soff} sc1\ns_mov_b64 exec, -1'
def nonce(A): A('s_mul_i32 s20, s20, 0x9e3779b1\ns_add_u32 s20, s20, 0x7f4a7c15')

def gemm2(A, n, k0, WDR, ACC, HR, vl, vl2, st, pre='', mid='', fl='', lb=0, vt=5, pu=10):
    A(f'''s_mul_i32 s40, s23, {2*112}
    s_mul_i32 s41, s54, 28
    s_add_u32 s40, s40, s41
    s_add_u32 s40, s40, {k0+HH//1024}
    s_add_u32 s41, s40, {n}
    s_add_u32 s42, s40, s36
    s_lshl_b32 s40, s40, 10
    s_lshl_b32 s41, s41, 10
    s_lshl_b32 s42, s42, 10''')
    free=list(HR); nr=min(len(free),n,NR); loc={}; q=[]; assert n-nr<=8
    A(f's_lshl_b32 s43, s54, 14\ns_add_u32 s43, s43, {lb}\nv_add_u32 v{vt}, s43, v{vl}')
    def ld(i):
        if i>=n: return
        q.extend([i]*2)
        for t,v in enumerate((vl,vl2)):
            if i<nr:
                if not t: loc[i]=free.pop(0)
                A(f'buffer_load_dwordx4 {vr(loc[i]+4*t,4)}, v{v}, {WS}, s42 offen')
            else: A(f's_add_u32 m0, s43, {(i-nr)*2048+t*1024}\nbuffer_load_dwordx4 v{v}, {WS}, s42 offen lds')
        if i<n-1: A('s_add_u32 s42, s42, 1024\ns_cmp_eq_u32 s42, s41\ns_cselect_b32 s42, s40, s42')
    for i in range(pu): ld(i)
    if fl: A(f's_waitcnt vmcnt({len(q)})'); A(fl); q.append('f')
    if pre: A(pre); q.append('p')
    vw=lambda i: A(f's_waitcnt vmcnt({len(q)-1-max(j for j,t in enumerate(q) if t==i)})')
    for i in range(n):
        if i<nr: vw(i)
        else: A('s_waitcnt lgkmcnt(0)')
        if i==0: A.stamp(st)
        if nr<=i+1<n:
            vw(i+1); loc[i+1]=free.pop(0)
            for t in range(2): A(f'ds_read_b128 {vr(loc[i+1]+4*t,4)}, v{vt} offset:{(i+1-nr)*2048+t*1024}')
        for ti in range(2):
            for di in range(2):
                a=ACC+16*(2*ti+di)
                A(f'v_mfma_f32_32x32x16_bf16 {vr(a,16)}, {vr(WDR[i]+4*di,4)}, {vr(loc[i]+4*ti,4)}, {"0" if i==0 else vr(a,16)}')
        free.append(loc[i])
        if i==5: finp(A,0); q.append('x'); assert pu+i<n and all(r in WDR[:5] for r in (224,232,240,248))
        ld(pu+i)
def wdloads(A, n, k0, regs, vl, mul, qm, R=(55,96,97,98)):
    A(f'''s_mul_i32 s36, s52, {mul}
    s_lshr_b32 s36, s36, 4
    s_and_b32 s{R[0]}, s23, 3
    s_mul_i32 s{R[0]}, s{R[0]}, {qm}
    s_add_u32 s36, s36, s{R[0]}
    s_cmp_ge_u32 s36, {n}
    s_cselect_b32 s{R[0]}, {n}, 0
    s_sub_u32 s36, s36, s{R[0]}
    s_mul_i32 s{R[1]}, s52, 112
    s_mul_i32 s{R[2]}, s54, 28
    s_add_u32 s{R[1]}, s{R[1]}, s{R[2]}
    s_add_u32 s{R[1]}, s{R[1]}, {k0+WD//2048}
    s_add_u32 s{R[2]}, s{R[1]}, {n}
    s_add_u32 s{R[3]}, s{R[1]}, s36
    s_lshl_b32 s{R[1]}, s{R[1]}, 11
    s_lshl_b32 s{R[2]}, s{R[2]}, 11
    s_lshl_b32 s{R[3]}, s{R[3]}, 11''')
    l=[]
    for i in range(n):
        for di in range(2): l.append(f'buffer_load_dwordx4 {vr(regs[i]+4*di,4)}, v{vl}, {WS}, s{R[3]} offen offset:{1024*di} {BL}'+(f'\ns_add_u32 s{R[3]}, s{R[3]}, 2048\ns_cmp_eq_u32 s{R[3]}, s{R[2]}\ns_cselect_b32 s{R[3]}, s{R[1]}, s{R[3]}' if di and i<n-1 else ''))
    return l

def lpoll(A, val, va=15, vt=1):
    L=A.label('AS')
    A(f's_mov_b32 s57, 0\n{L}:\nds_read_b32 v{vt}, v{va}\ns_add_u32 s57, s57, 1\ns_waitcnt lgkmcnt(0)\nv_cmp_gt_u32 vcc, {val}, v{vt}\ns_cbranch_vccz {L}x\ns_cmp_lt_u32 s57, {SPIN*16}\ns_cbranch_scc1 {L}\n{L}x:')
def finp(A, g):
    A.srd(24,4,XB); A.srd(28,14,XB)
    A(f'''v_lshrrev_b32 v242, 3, v0
    v_and_b32 v243, 7, v0
    s_lshl_b32 s38, s3, 3
    s_lshl_b32 s39, s23, 6
    s_add_u32 s39, s39, s38
    s_mul_i32 s39, s39, 896
    s_lshl_b32 s47, s52, 7
    s_add_u32 s39, s39, s47
    v_mul_u32_u24 v236, 896, v242
    v_lshl_add_u32 v236, v243, 4, v236
    buffer_load_dwordx4 v[232:235], v236, s[24:27], s39 offen
    v_and_b32 v225, 31, v0
    v_lshrrev_b32 v224, 5, v0
    v_and_b32 v226, 1, v0
    v_xor_b32 v224, v224, v243
    v_lshl_or_b32 v224, v226, 3, v224
    v_lshlrev_b32 v224, 4, v224
    v_lshl_or_b32 v224, v225, 8, v224
    v_add_u32 v224, s43, v224''')
    for k in range(1,8): A(f'v_xor_b32 v{224+k}, {32*k}, v224')
    A(f'''v_and_b32 v237, 1, v242
    v_lshl_or_b32 v237, v237, 3, v242
    v_xor_b32 v237, v237, v243
    v_lshlrev_b32 v237, 4, v237
    v_add_u32 v242, s38, v242
    v_lshl_or_b32 v237, v242, 8, v237
    v_xor_b32 v238, 128, v237
    v_add_u32 v239, {GR}, v237
    v_add_u32 v240, {GR}, v238
    v_mul_u32_u24 v241, 1040, v243
    v_lshl_add_u32 v241, v242, 1, v241
    v_add_u32 v241, {SL}, v241
    v_mov_b32 v242, {hex(NLOG2E)}
    v_mov_b32 v243, {hex(NLOG2E)}''')
    for i in range(8): A(f'v_mov_b32 v{244+i}, 0')
def fin0(A, g):
    ACC=16
    for ti in range(2):
        for di in range(2):
            for q in range(4): A(f'ds_write_b128 v{224+4*di+q}, {vr(ACC+16*(2*ti+di)+4*q,4)} offset:{8192*ti}')
def final(A, st):
    R=96; S=244; X=160
    A('FINAL:')
    for i in range(0,8,2): A(f'v_lshlrev_b32 v{X+i}, 16, v{232+i//2}\nv_and_b32 v{X+1+i}, 0xffff0000, v{232+i//2}')
    A('s_waitcnt lgkmcnt(0)')
    A.stamp(st)
    A('s_barrier')
    A.stamp(st+1)
    NP=5 if PRE else 8; kk=1 if PRE else 3
    for k in range(NP):
        for hf in range(2): A(f'ds_read_b128 {vr(R+8*k+4*hf,4)}, v{237+2*(k>>2)+hf} offset:{16384*(k&3)}')
    for k in range(1,NP):
        A(f's_waitcnt lgkmcnt({min(15,2*NP-2-2*k+(8 if k>kk else 0))})')
        for i in range(0,8,2): A(f'v_pk_add_f32 {vr(R+i,2)}, {vr(R+i,2)}, {vr(R+8*k+i,2)}')
        if k==kk:
            for e in range(8): A(f'ds_read_u16_d16_hi v{S+e}, v241 offset:{128*e}')
    T=24
    for i in range(0,8,2): A(f'v_cvt_pk_bf16_f32 v{T+i}, v{R+i//2}, v{R+4+i//2}')
    for i in range(0,8,2): A(f'v_lshlrev_b32 v{R+i}, 16, v{T+i}\nv_and_b32 v{R+i+1}, 0xffff0000, v{T+i}')
    for i in range(0,8,2): A(f'v_pk_mul_f32 {vr(T+i,2)}, {vr(R+i,2)}, v[242:243]')
    for i in range(8): A(f'v_exp_f32 v{T+i}, v{T+i}')
    for i in range(0,8,2): A(f'v_pk_add_f32 {vr(T+i,2)}, {vr(T+i,2)}, 1.0 op_sel_hi:[1,0]')
    for i in range(8): A(f'v_rcp_f32 v{T+i}, v{T+i}')
    for i in range(0,8,2): A(f'v_pk_mul_f32 {vr(R+i,2)}, {vr(R+i,2)}, {vr(T+i,2)}')
    for i in range(0,8,2): A(f'v_cvt_pk_bf16_f32 v{T+i}, v{R+i}, v{R+i+1}')
    for i in range(0,8,2): A(f'v_lshlrev_b32 v{R+i}, 16, v{T+i}\nv_and_b32 v{R+i+1}, 0xffff0000, v{T+i}')
    A('s_waitcnt lgkmcnt(0)')
    for i in range(0,8,2): A(f'v_pk_mul_f32 {vr(R+i,2)}, {vr(R+i,2)}, {vr(S+i,2)}')
    for i in range(0,8,2): A(f'v_cvt_pk_bf16_f32 v{T+i}, v{R+i}, v{R+i+1}')
    for i in range(0,8,2): A(f'v_lshlrev_b32 v{R+i}, 16, v{T+i}\nv_and_b32 v{R+i+1}, 0xffff0000, v{T+i}')
    for i in range(0,8,2): A(f'v_pk_add_f32 {vr(R+i,2)}, {vr(R+i,2)}, {vr(X+i,2)}')
    for i in range(0,8,2): A(f'v_cvt_pk_bf16_f32 v{T+i//2}, v{R+i}, v{R+i+1}')
    A(f'buffer_store_dwordx4 {vr(T,4)}, v236, s[28:31], s39 offen')
    A.dump(0,st+2)

ROTC=['s_mov_b32 s59, s21', 's_and_b32 s59, s21, 3\ns_lshl_b32 s59, s59, 2\ns_lshr_b32 s97, s21, 2\ns_or_b32 s59, s59, s97',
 's_and_b32 s59, s21, 1\ns_lshl_b32 s59, s59, 3\ns_lshr_b32 s97, s21, 1\ns_or_b32 s59, s59, s97']
def dmaprep(A):
    A(f"""v_lshrrev_b32 v4, 3, v0
    v_lshrrev_b32 v5, 4, v0
    v_and_b32 v6, 7, v0
    v_xor_b32 v6, v6, v5
    v_mul_u32_u24 v112, 896, v4
    v_lshl_add_u32 v112, v6, 4, v112
    v_xor_b32 v113, 64, v112
    v_add_u32 v113, 7168, v113
    v_and_b32 v6, 15, v0
    v_lshlrev_b32 v7, 2, v5
    v_xor_b32 v6, v6, v7
    v_mul_u32_u24 v114, 3584, v5
    v_lshl_add_u32 v114, v6, 4, v114
    v_add_u32 v115, 14336, v114
    s_mul_i32 s55, s21, {128*896}
    s_mul_i32 s96, s54, 14336
    s_add_u32 s55, s55, s96
    s_lshl_b32 s56, s22, 7
    s_add_u32 s56, s56, s96
    s_lshl_b32 s56, s56, 1
    s_lshl_b32 s96, s54, 11
    s_add_u32 s98, s55, 896
    s_add_u32 s99, s56, {448*3584}
    {ROTC[ROT]}
    s_lshr_b32 s97, s59, 2
    s_lshl_b32 s97, s97, 1
    s_add_u32 s97, s97, {'s52' if RR else 0}
    s_cmp_ge_u32 s97, 7
    s_cselect_b32 s57, 7, 0
    s_sub_u32 s97, s97, s57
    s_lshl_b32 s57, s97, 7
    s_add_u32 s55, s55, s57
    s_mul_i32 s57, s97, {64*3584}
    s_add_u32 s56, s56, s57""")
ADVX='s_add_u32 s55, s55, 128\ns_cmp_eq_u32 s55, s98\ns_cselect_b32 s57, 896, 0\ns_sub_u32 s55, s55, s57'
ADVW=f's_add_u32 s56, s56, {32*3584}\ns_cmp_eq_u32 s56, s99\ns_cselect_b32 s57, {448*3584}, 0\ns_sub_u32 s56, s56, s57'
def dmax(j,h,V=112):
    l=[(f's_add_u32 m0, s96, {XR+(j%3)*16384+8192*h+1024*i}', f'buffer_load_dwordx4 v{V+i}, s[24:27], s{100 if h else 55} offen lds', ('x',j)) for i in range(2)]
    if h: l[0]=(f's_add_u32 s100, s55, {64*896}\n'+l[0][0],)+l[0][1:]; l[1]=(l[1][0],l[1][1]+'\n'+ADVX,l[1][2])
    return l
def dmaw(s,V=112,ks=(1,0)):
    l=[(f's_add_u32 m0, s96, {GR+32768*k+((s+1)%4)*8192+1024*i}', f'buffer_load_dwordx4 v{V+2+i}, {sr(28+4*k,4)}, s56 offen lds', ('w',s)) for k in ks for i in range(2)]
    if l: l[-1]=(l[-1][0],l[-1][1]+'\n'+ADVW,l[-1][2])
    return l
def sched(own,V):
    D={s:[] for s in range(13)}; ks=tuple(k for k in (1,0) if 'gu'[k] in own)
    for s in range(1,11):
        w=dmaw(s+3,V,ks)
        for i,k in enumerate(ks): D[s].append(w[2*i:2*i+2])
    if 'x' in own:
        xs=[dmax(j,h,V) for j in range(2,7) for h in range(2)]
        D[1]+=xs[:2]
        for s in range(2,10): D[s].append(xs[s])
    return D

PR=120; DT=126
def pkc(o,z,w): return [f'v_pk_mul_f32 {vr(o,2)}, {vr(z,2)}, {vr(w,2)}', f'v_pk_mul_f32 {vr(o+2,2)}, {vr(z,2)}, {vr(w+2,2)}', f'v_pk_fma_f32 {vr(o,2)}, {vr(z+2,2)}, {vr(w+2,2)}, {vr(o,2)} neg_lo:[1,0,0] neg_hi:[1,0,0]', f'v_pk_fma_f32 {vr(o+2,2)}, {vr(z+2,2)}, {vr(w,2)}, {vr(o+2,2)}']
def unp(d,n,dt):
    l=[]
    for i in range(2): l+=[f'v_lshlrev_b32 v{d+2*i}, 16, v{n+i}', f'v_and_b32 v{d+2*i+1}, 0xffff0000, v{n+i}']
    if dt: l+=[f'v_pk_mul_f32 {vr(d+2*i,2)}, {vr(d+2*i,2)}, {vr(DT,2)} op_sel_hi:[1,0]' for i in range(2)]
    return l
def cexp(o,t,P,lg):
    l=[f'v_mul_f32 v{t+i}, {hex((0x3e22f983 if i>1 else LOG2E)+(lg<<23))}, v{P+i}' for i in (2,3,0,1)]
    l+=[f'v_fract_f32 v{t+i}, v{t+i}' for i in (2,3)]+[f'v_exp_f32 v{t+i}, v{t+i}' for i in (0,1)]
    l+=[f'v_cos_f32 v{o+i}, v{t+2+i}' for i in (0,1)]+[f'v_sin_f32 v{o+2+i}, v{t+2+i}' for i in (0,1)]
    return l+[f'v_pk_mul_f32 {vr(o+2*i,2)}, {vr(o+2*i,2)}, {vr(t,2)}' for i in range(2)]
def dtcalc(A):
    A(f"""s_lshr_b32 s57, s54, 1
    s_lshl_b32 s57, s57, 4
    s_lshr_b32 s100, s100, s57
    s_lshl_b32 s100, s100, 16
    s_lshr_b32 s101, s101, s57
    v_mov_b32 v{DT}, {hex(LOG2E)}
    v_mul_f32 v{DT}, s100, v{DT}
    v_exp_f32 v{DT}, v{DT}""")
    bfr(A,DT,DT); nonce(A)
def kgen_lo():
    P,T,E=128,132,[0,136,140,144,148]; Q=184
    def put(row,z,q): return [f'v_cvt_pk_bf16_f32 v{q}, v{z}, v{z+1}', f'v_cvt_pk_bf16_f32 v{q+1}, v{z+2}, v{z+3}', f'ds_write_addtid_b32 v{q} offset:{LOA+(row-1)*LP}', f'ds_write_addtid_b32 v{q+1} offset:{LOA+(row-1)*LP+256}']
    out=unp(P,PR,1)+cexp(E[1],T,P,3)+interleave(pkc(E[2],E[1],E[1]),put(1,E[1],Q))+interleave(pkc(E[4],E[2],E[2]),pkc(E[3],E[2],E[1]),put(2,E[2],Q+2))
    ch=[]
    for b in (1,2,3,4):
        l=put(b,E[b],Q+2*b-2) if b>2 else []; z=E[b]
        for n,j in enumerate(range(b+4,32,4)):
            o=152+8*(b-1)+4*(n&1); l+=pkc(o,z,E[4])+put(j,o,Q+2*b-2); z=o
        ch.append(l)
    return out+interleave(*ch)
HQ=48
def kgen_hi():
    P,B,C,T1,T2,E1,G=192,196,200,204,208,216,220; H=[224+4*i for i in range(8)]
    hc=lambda k,z: [f'v_cvt_pk_bf16_f32 v{HQ+k}, v{z}, v{z+1}', f'v_cvt_pk_bf16_f32 v{HQ+21+k}, -v{z+2}, -v{z+3}']
    out=unp(P,PR,1)+interleave(cexp(E1,T1,P,0),cexp(G,T2,P,8),unp(B,PR+2,1)+unp(C,PR+4,0)+pkc(H[0],C,B))
    a=hc(0,H[0]); b=[]; c=[]
    for k in range(1,8): a+=pkc(H[k],H[k-1],E1)+hc(k,H[k])
    z=H[0]
    for n,row in enumerate((8,12,14,16,17,18,19,20)):
        o=192+4*(n&1); b+=pkc(o,z,G)+hc(row,o); z=o
    z=H[4]
    for n,row in enumerate((10,13,15)):
        o=200+4*(n&1); c+=pkc(o,z,G)+hc(row,o); z=o
    d=pkc(208,H[2],G)+hc(9,208)+pkc(212,H[6],G)+hc(11,212)
    return out+interleave(a,b[:30])+interleave(c,d,b[30:])

def gwave(A, gp=1, NE=0, xm=100, gs=0, th=1, gw=8, es=21, tp=0, g2p=0, gv=1, gm=27, ep=1, gf=0):
    gc=[0]; st0=A.stamp
    def gst(): gc[0]+=1; st0(gc[0])
    if gs: A.stamp=lambda i: st0(i) if i>10 else None
    A(f"""GW:
    s_and_b32 s39, s3, 1""")
    for x in dmax(0,0)+dmax(0,1): A((x[0]+'\n'+x[1]).replace('s100','s58'))
    if tp:
        A(f"""s_cmp_eq_u32 s39, 0
        s_cselect_b32 s40, s28, s32
        s_cselect_b32 s41, s29, s33
        s_mov_b32 s42, s30
        s_mov_b32 s43, s31
        s_and_b32 s44, s21, 3
        s_lshl_b32 s44, s44, 3
        s_lshl_b32 s45, s97, 6
        s_add_u32 s44, s44, s45
        s_add_u32 s44, s44, 32
        v_lshrrev_b32 v4, 4, v0
        v_lshl_add_u32 v4, v4, 5, s44
        v_bfe_u32 v5, v0, 1, 3
        v_add_u32 v4, v4, v5
        v_subrev_u32 v5, 448, v4
        v_min_u32 v4, v4, v5
        v_mul_u32_u24 v4, 3584, v4
        v_and_b32 v5, 1, v0
        v_lshl_add_u32 v4, v5, 7, v4
        s_lshl_b32 s44, s22, 8
        s_cmp_lt_u32 s3, 2
        s_cbranch_scc1 TP_W
        s_mov_b32 s40, s24
        s_mov_b32 s41, s25
        s_mov_b32 s42, s26
        s_add_u32 s45, s97, s3
        s_sub_u32 s45, s45, 1
        s_cmp_ge_u32 s45, 7
        s_cselect_b32 s44, 7, 0
        s_sub_u32 s45, s45, s44
        s_lshl_b32 s45, s45, 7
        s_mul_i32 s44, s21, {128*896}
        s_add_u32 s44, s44, s45
        s_mul_i32 s45, s52, 19
        v_min_u32 v4, 18, v0
        v_add_u32 v4, s45, v4
        v_min_u32 v4, 127, v4
        v_mul_u32_u24 v4, 896, v4
        TP_W:
        buffer_load_dword v209, v4, s[40:43], s44 offen""")
    A.stamp(1)
    pro=f"""v_and_b32 v4, 31, v0
    v_lshrrev_b32 v7, 5, v0
    v_bfe_u32 v6, v0, 1, 3
    v_xor_b32 v5, v7, v6
    s_lshl_b32 s40, s39, 13
    s_add_u32 s40, s40, {XR}
    v_lshl_add_u32 v10, v4, 7, s40
    v_lshl_add_u32 v8, v5, 4, v10
    v_xor_b32 v9, 32, v8
    v_xor_b32 v10, 64, v8
    v_xor_b32 v11, 96, v8
    v_bfe_u32 v6, v0, 2, 2
    v_lshl_add_u32 v5, v7, 3, v6
    v_lshlrev_b32 v5, 8, v5
    v_bfe_u32 v3, v0, 4, 1
    v_lshl_add_u32 v5, v3, 5, v5
    v_and_b32 v3, 3, v0
    v_lshl_add_u32 v5, v3, 3, v5
    v_add_u32 v5, {GR}, v5
    s_and_b32 s40, s3, 2
    v_xor_b32 v6, s40, v6
    v_lshl_add_u32 v12, v6, 6, v5
    v_xor_b32 v13, 64, v12
    v_add_u32 v14, 32768, v12
    v_add_u32 v15, 32768, v13
    s_lshl_b32 s40, s40, 8
    s_add_u32 s41, s40, {CST}
    v_lshl_add_u32 v204, v4, 3, s41
    s_lshl_b32 s41, s39, 10
    s_add_u32 s40, s40, s41
    s_add_u32 s41, s41, {STT}
    v_lshl_add_u32 v205, v4, 4, s41
    v_mov_b32 v200, 0x3f803f80
    v_mov_b32 v201, v200
    v_mov_b32 v202, v200
    v_mov_b32 v203, v200
    v_lshlrev_b32 v2, 4, v0
    v_add_u32 v1, {112*1024}, v2
    v_lshlrev_b32 v6, 3, v0
    v_cmp_gt_u32 vcc, 32, v0
    s_and_b32 s43, s59, 3
    s_mov_b32 s42, s59
    s_cmp_ge_u32 s42, 14
    s_cselect_b32 s43, 32, s43
    s_lshl_b32 s45, s22, 4
    s_add_u32 s42, s42, s45
    s_lshl_b32 s42, s42, 11
    s_add_u32 s42, s42, s40
    s_add_u32 s42, s42, {CSP}
    s_lshl_b32 s43, s43, 1
    s_add_u32 s43, s43, s39
    s_lshl_b32 s45, s53, 7
    s_add_u32 s45, s45, {FZ}
    s_lshl_b32 s37, s21, 1
    s_add_u32 s37, s37, s39
    s_mul_i32 s44, s37, 28
    s_mul_i32 s37, s37, 224
    s_lshl_b32 s38, s22, 1
    s_lshr_b32 s40, s3, 1
    s_add_u32 s38, s38, s40
    s_add_u32 s44, s44, s38
    s_lshl_b32 s44, s44, 7
    s_add_u32 s44, s44, {FH}
    s_lshl_b32 s38, s38, 2
    s_add_u32 s37, s37, s38
    s_lshl_b32 s37, s37, 10
    s_add_u32 s37, s37, {HH}
    s_add_u32 s38, s37, {112*1024}
    s_mul_i32 s40, s23, 28
    s_mul_i32 s41, s54, 7
    s_add_u32 s40, s40, s41
    s_lshl_b32 s40, s40, 7
    s_add_u32 s40, s40, {FH}
    v_min_u32 v3, 6, v0
    v_lshl_add_u32 v4, v3, 7, s40
    s_lshl_b32 s40, s3, 2
    s_add_u32 s40, s40, {SYNC}
    v_mov_b32 v7, s40
    s_mul_i32 s46, s54, {LW}
    s_mov_b32 m0, s46
    s_waitcnt lgkmcnt(0)"""
    A(pro); dtcalc(A)
    A(f'v_and_b32 v214, 3, v0\nv_lshlrev_b32 v214, 2, v214\nv_add_u32 v214, {SYNC+16}, v214')
    WR=list(range(216,256,8))+list(range(128,216,8)); WR=WR[:NG]
    wl=wdloads(A,NG,0,WR,2,16*NG//7,NG//4,(58,59,60,61))
    A('\n'.join([ADVX]+[ADVW]*4+[f'v_mov_b32 v{210+i}, v{112+i}' for i in range(4)]))
    D=sched(GO,210); vm=[]; dq=[]
    A.stamp(2); A(f's_waitcnt vmcnt({4+tp})'); A.stamp(3)
    for x in kgen_lo(): A(x)
    FR=16; ACC=64
    def reads(step):
        s,ks=divmod(step,2); o=((s+1)%4)*8192; b=FR+24*(step&1); out=[]
        for ti in range(2): out.append(f'ds_read_b128 {vr(b+4*ti,4)}, v{8+(step&3)} offset:{(step//4%3)*16384+ti*4096}')
        for gu in range(2):
            for fi in range(2):
                for p in range(2): out.append(f'ds_read_b64_tr_b16 {vr(b+8+8*gu+4*fi+2*p,2)}, v{12+2*gu+fi} offset:{o+ks*4096+p*1024}')
        return out
    def mfmas(step):
        b=FR+24*(step&1); out=[]
        for ti in (1,0):
            for fi in (1,0):
                for gu in range(2):
                    a=ACC+16*(4*ti+2*fi+gu)
                    out.append(f'v_mfma_f32_32x32x16_bf16 {vr(a,16)}, {vr(b+8+8*gu+4*fi,4)}, {vr(b+4*ti,4)}, {"0" if step==0 else vr(a,16)}')
        return out
    A(f's_setprio {gp}\ns_waitcnt vmcnt({tp}) lgkmcnt(0)'); A.stamp(4); A('s_barrier'); A.stamp(5)
    for r in reads(0): A(r)
    SV=192; vd=-1
    for step in range(29):
        if gs and gs<=step<gs+4: gst()
        A('s_waitcnt lgkmcnt(0)')
        if gs and gs<=step<gs+4: gst()
        nxt=step+1
        if step==gm: A(f'v_mov_b32 v213, {V2}\nds_write_b32 v7, v213')
        if nxt<26 and nxt%2==0:
            idx=[i for i,t in enumerate(vm) if t in (('w',nxt//2),('x',nxt//4))]
            if idx and max(idx)>vd: vd=max(idx); A(f's_waitcnt vmcnt({len(vm)-1-vd})')
            A('s_barrier')
            if gs and gs<=step<gs+4: gst()
        if step==0 or step&1 and nxt<26:
            assert not dq
            dq=sum(D[nxt//2],[]); per=len(dq) if step==0 else (len(dq)+1)//2
        slots=((),(5,),(4,6),(3,5,7),(1,3,5,7))[per]
        if nxt<28: rd=reads(nxt)+(['ds_read_b32 v215, v214'] if nxt==27 else [])
        elif nxt==28:
            A(f's_mov_b32 s57, 0\ns_branch GT_1\nGT_0:\nds_read_b32 v215, v214\ns_add_u32 s57, s57, 1\ns_waitcnt lgkmcnt(0)\nGT_1:\nv_cmp_gt_u32 s[62:63], {V1}, v215\ns_nop 1\ns_cmp_eq_u64 s[62:63], 0\ns_cbranch_scc1 GT_2\ns_cmp_lt_u32 s57, {SPIN*16}\ns_cbranch_scc1 GT_0\nGT_2:')
            b=FR; rd=[f'ds_read_b128 {vr(SV+4*ti,4)}, v205 offset:{512*ti}' for ti in range(2)]
            rd+=[f'ds_read_b64 {vr(b+8+8*gu+4*fi,2)}, v204 offset:{1024*gu+256*fi}' for gu in range(2) for fi in range(2)]
            rd+=[f'v_mov_b32 v{b+r}, 0\nv_mov_b32 v{b+r+1}, 0' for r in (2,6,10,14,18,22)]
        else:
            rd=[]
            for ti in range(2): A(f'v_cndmask_b32 v{FR+4*ti}, 0, v{SV+4*ti}, vcc\nv_and_b32 v{FR+4*ti+1}, 0xffff, v{FR+4*ti}')
            rd=[f'v_mov_b32 v{S}, v{S+1}\nv_mov_b32 v{S+3}, v{S+2}' for S in (SV,SV+4)]
        for i,m in enumerate(mfmas(step)):
            if i in slots and dq: A(dq[0][0])
            A(m)
            if i in slots and dq: x=dq.pop(0); A(x[1]); vm.append(x[2])
            for r in rd[2*i:2*i+2]: A(r)
            if step>=es and i in (2,6) and 2*NG-len(wl)<NE: A(wl.pop(0))
            if step<8 and i in (5,6):
                gu=i-5; L=A.label('CS'); b=FR+24*(step&1)
                A(f's_cmp_eq_u32 s43, {(step&~1)+gu}\ns_cbranch_scc0 {L}')
                for fi in range(2): A(f'v_mfma_f32_32x32x16_bf16 {vr(224+16*fi,16)}, v[200:203], {vr(b+8+8*gu+4*fi,4)}, {vr(224+16*fi,16) if step&1 else "0"}')
                A(f'{L}:')
            if step==8 and i==5:
                A(f's_cmp_ge_u32 s43, 14\ns_cbranch_scc1 CS_X\nv_cndmask_b32 v206, v240, v224, vcc\nv_mov_b32 v207, s20\nbuffer_store_dwordx2 v[206:207], v6, {WS}, s42 offen sc1\nCS_X:')
            if step==9 and i==5:
                A('s_cmp_lg_u32 s3, 0\ns_cbranch_scc1 CS_Y'); A(flag(A,45,208)); A('CS_Y:')
    A.stamp(6); A(f's_setprio {ep}')
    for ti in (1,0):
        S=SV+4*ti
        for fi in (1,0):
            g=ACC+16*(4*ti+2*fi); u=g+16
            for i in range(0,16,2): A(f'v_pk_mul_f32 {vr(g+i,2)}, {vr(g+i,2)}, {vr(S,2)}')
            for i in range(16): A(f'v_exp_f32 v{g+i}, v{g+i}')
            for i in range(0,16,2): A(f'v_pk_fma_f32 {vr(g+i,2)}, {vr(g+i,2)}, {vr(S+2,2)}, {vr(S+2,2)}')
            for i in range(16): A(f'v_rcp_f32 v{g+i}, v{g+i}')
            for i in range(0,16,2): A(f'v_pk_mul_f32 {vr(u+i,2)}, {vr(u+i,2)}, {vr(g+i,2)}')
            if (ti,fi)==(0,0): A('ds_write_b32 v7, v200')
            for i in range(0,16,2): A(f'v_cvt_pk_bf16_f32 v{g+i//2}, v{u+i}, v{u+i+1}')
            for k in range(2): A(f'buffer_store_dwordx4 {vr(g+4*k,4)}, v2, {WS}, s{37+ti} offen offset:{fi*2048+k*1024} sc1')
    A.stamp(7)
    A(f's_setprio {g2p}\nv_add_u32 v8, 16, v7\nds_read_b32 v5, v8\ns_waitcnt lgkmcnt(0)\nv_cmp_gt_u32 vcc, {gv}, v5\ns_cbranch_vccz G_F\ns_waitcnt vmcnt(0)'); A(flag(A,44,5)); lpoll(A,gv,8,5); A('G_F:')
    for x in wl[:gw]: A(x)
    A(f's_waitcnt vmcnt({gw})'); A(flag(A,44,5)); A.stamp(8)
    wl=wl[gw:]; gf=min(gf,len(wl))
    for x in wl[:len(wl)-gf]: A(x)
    if gf: A(f'buffer_load_dword v9, v4, {WS}, 0 offen sc1')
    for x in wl[len(wl)-gf:]: A(x)
    A(f"""s_lshr_b32 s46, s23, 4
    s_mul_i32 s46, s46, 448
    s_lshl_b32 s47, s52, 6
    s_lshl_b32 s48, s3, 4
    s_add_u32 s47, s47, s48
    s_add_u32 s46, s46, s47
    s_lshl_b32 s46, s46, 7
    s_add_u32 s46, s46, {FS}
    v_and_b32 v3, 15, v0
    v_lshl_add_u32 v3, v3, 7, s46
    s_mul_i32 s46, s23, 448
    s_add_u32 s46, s46, s47
    s_lshl_b32 s46, s46, 7
    s_add_u32 s46, s46, {ST}
    s_mul_i32 s47, s3, 2080
    s_add_u32 s47, s47, {SL}
    v_add_u32 v14, s47, v2
    v_mov_b32 v13, v2
    s_mul_i32 s48, s52, {-(-NA*8//7)}
    v_and_b32 v12, 31, v0
    v_min_u32 v12, {-(-NA*8//7)-1}, v12
    v_add_u32 v12, s48, v12
    v_min_u32 v12, {NA*8-1}, v12
    v_lshlrev_b32 v12, 7, v12
    v_lshrrev_b32 v11, 5, v0
    v_mul_u32_u24 v11, {112*1024}, v11
    v_add_u32 v12, v12, v11
    v_and_b32 v15, 3, v0
    v_lshlrev_b32 v15, 2, v15
    v_add_u32 v15, {SYNC}, v15""")
    lpoll(A,V3,15,5); A.stamp(9)
    if gf: A(f's_waitcnt vmcnt({gf})\nv_cmp_ne_u32 vcc, s20, v9\ns_cbranch_vccz G_H')
    poll(A,4,5); A('G_H:\nv_mov_b32 v5, -1\nds_write_b32 v7, v5'); A.stamp(10)
    gemm2(A,NG,0,WR,16,[r for r in range(80,216,8) if r not in WR],2,1,11,f'buffer_load_dword v11, v12, {WS}, s41 offen' if th else '', lb=GR, vt=5, pu=PG)
    A.stamp(1); A(f'buffer_load_dword v4, v3, {WS}, 0 offen sc1')
    fin0(A,1)
    if PRE: A(f's_lshl_b32 s40, s3, 2\ns_add_u32 s40, s40, {SYNC+32}\nv_mov_b32 v6, s40\nv_add_u32 v15, 32, v15\ns_waitcnt lgkmcnt(0)\nds_write_b32 v6, v6')
    A.stamp(2); poll(A,3,4,True); A.stamp(3)
    A(f"""buffer_load_dwordx4 v[84:87], v13, {WS}, s46 offen sc1
    buffer_load_dwordx4 v[88:91], v13, {WS}, s46 offen offset:1024 sc1""")
    if PRE:
        lpoll(A,1,15,6); R=96
        for k in range(4):
            for j in range(4): A(f'ds_read_b128 {vr(R+16*k+4*j,4)}, v{239+(j&1)} offset:{16384*k+8192*(j>>1)}')
        for k in range(1,4):
            A(f's_waitcnt lgkmcnt({12-4*k})')
            for i in range(0,16,2): A(f'v_pk_add_f32 {vr(R+i,2)}, {vr(R+i,2)}, {vr(R+16*k+i,2)}')
        for j in range(4): A(f'ds_write_b128 v{239+(j&1)}, {vr(R+4*j,4)} offset:{8192*(j>>1)}')
    A(f"""s_waitcnt vmcnt(1)
    ds_write_b128 v14, v[84:87]
    s_waitcnt vmcnt(0)
    ds_write_b128 v14, v[88:91] offset:1040
    s_branch FINAL""")
    A.stamp=st0

def awave(A, ap=2, cp=0, NW=99, TH=8, wm=90, ew='0,0,4,4,8', stg=0, nok=0, w1=2, rs=3, fs=10, cs=9, ts=12, kd=10, sp=2, h10=0, h11=12, cw=15, tp2=2, h12=10, e12=0, a2p=0, hk=999, h0=0):
    A.cur=0; A.names=[]
    def async_(v,w=1):
        A(f's_waitcnt lgkmcnt(0)\nv_mov_b32 v1, {v}\nds_write_b32 v14, v1')
        if w: lpoll(A,v)
    vm=[]; M0=['s45']
    def emit(g):
        for x in g: A(x[0]+'\n'+x[1]); vm.append(x[2])
        if M0[0]: A(f's_mov_b32 m0, {M0[0]}')
    def vwait(tags):
        idx=[i for i,t in enumerate(vm) if t in tags]
        if idx: A(f's_waitcnt vmcnt({len(vm)-1-max(idx)})')
    L_=lambda t:[x.strip() for x in t.split('\n') if x.strip()]
    A('AW:'); A.st('a0'); M0[0]=None; emit(dmaw(0)+(dmaw(1) if w1==0 else [])); A.st('a1')
    A(ADVX)
    A(f"""s_lshr_b32 s48, s54, 1
    s_and_b32 s49, s54, 1
    v_and_b32 v28, 15, v0
    v_lshrrev_b32 v29, 4, v0
    v_mul_u32_u24 v5, {LP}, v28
    v_lshl_add_u32 v5, v29, 4, v5
    s_mul_i32 s38, s48, {2*LW}
    s_mul_i32 s39, s49, {16*LP}
    s_add_u32 s38, s38, s39
    s_add_u32 s38, s38, {LOA-LP}
    v_add_u32 v37, s38, v5
    s_mul_i32 s45, s54, {HW}
    s_cmp_eq_u32 s49, 0
    s_cselect_b32 s42, 0xfffefffe, -1
    s_mov_b32 s43, s42
    v_lshlrev_b32 v3, 4, v0
    s_cmp_ge_u32 s53, 196
    s_cselect_b32 s38, 196, 0
    s_sub_u32 s38, s53, s38
    s_mul_i32 s39, s38, 293
    s_lshr_b32 s39, s39, 11
    s_mul_i32 s40, s39, 7
    s_sub_u32 s38, s38, s40
    s_lshl_b32 s39, s39, 2
    s_add_u32 s39, s39, s54
    s_mul_i32 s36, s39, {16*896}
    s_lshl_b32 s40, s38, 7
    s_add_u32 s36, s36, s40
    s_add_u32 s37, s36, {8*896}
    s_mul_i32 s38, s38, 112
    s_add_u32 s38, s38, s39
    s_lshl_b32 s41, s38, 11
    s_add_u32 s41, s41, {WD}
    s_lshl_b32 s58, s38, 7
    s_add_u32 s58, s58, {FW}
    v_lshrrev_b32 v4, 5, v0
    v_and_b32 v5, 31, v0
    v_mul_u32_u24 v46, 3584, v4
    v_lshl_add_u32 v46, v5, 2, v46""")
    A.srd(8,12,WB); rl=[('',f'buffer_load_dword v{96+e}, v46, s[8:11], s{36+e//4} offen offset:{896*(e&3)} nt','r') for e in range(8)]
    for k in range(64): A(f'v_mov_b32 v{128+k}, {0 if k&16 else "0x3f803f80"}')
    if w1==1: emit(dmaw(1))
    A('s_waitcnt lgkmcnt(0)')
    dtcalc(A); A('s_lshl_b32 s46, s101, 16')
    A.st('a2'); A(f's_waitcnt vmcnt({len(vm)})'); A.st('a3')
    pd=(dmaw(1) if w1==2 else [])+dmax(1,0)+dmax(1,1)+dmaw(2)+dmaw(3)
    KH=kgen_hi(); print('kgen_hi',len(KH))
    for i,x in enumerate(KH[:hk]):
        if kd and i%kd==0 and pd: emit([pd.pop(0)])
        A(x)
    A.st('a4'); emit(pd)
    A.st('a5'); vwait([('w',0)]); A('s_barrier')
    eo=[128*i+k for i in range(4) for k in range(3)]
    Pg=L_(f"""s_mov_b32 s38, {KD}
    s_lshl_b32 s39, s54, 9
    v_lshl_add_u32 v5, v0, 1, s39
    v_sub_u32 v5, 2047, v5
    v_cvt_f32_u32 v5, v5""")
    for e in range(0,12,2):
        Pg+=L_(f"""v_add_f32 v6, {fh(-eo[e])}, v5
        v_add_f32 v7, {fh(-eo[e+1])}, v5
        v_cvt_pk_bf16_f32 v6, v6, v7
        v_and_b32 v7, 0xffff0000, v6
        v_lshlrev_b32 v6, 16, v6
        v_cvt_i32_f32 v6, v6
        v_cvt_i32_f32 v7, v7
        v_lshl_add_u32 v{16+e}, v6, 1, s38
        v_lshl_add_u32 v{17+e}, v7, 1, s38""")
    Ps=L_(f"""s_lshl_b32 s38, s3, 2
    s_add_u32 s38, s38, {SYNC}
    v_mov_b32 v14, s38
    v_and_b32 v15, 7, v0
    v_lshlrev_b32 v15, 2, v15
    v_add_u32 v15, {SYNC}, v15
    s_mul_i32 s38, s48, {KSZ}
    s_lshl_b32 s39, s49, 8
    s_add_u32 s38, s38, s39
    s_add_u32 s38, s38, {KD}
    v_lshl_add_u32 v7, v28, 4, s38
    v_lshl_add_u32 v36, v29, 11, v7
    v_max_u32 v5, 1, v29
    v_lshlrev_b32 v6, v5, 1
    v_lshlrev_b32 v5, 9, v5
    v_subrev_u32 v5, 512, v5
    v_lshlrev_b32 v8, 3, v29
    v_cmp_gt_u32 vcc, 32, v0
    v_cndmask_b32 v5, v5, v8, vcc
    v_add_u32 v32, v7, v5
    v_add_u32 v33, v32, v6
    v_lshlrev_b32 v8, 1, v6
    v_mov_b32 v9, 512
    v_cmp_gt_u32 vcc, 48, v0
    v_cndmask_b32 v8, v9, v8, vcc
    v_add_u32 v34, v32, v8
    v_add_u32 v35, v33, v8
    v_mul_u32_u24 v5, {LP}, v28
    v_lshl_add_u32 v5, v29, 4, v5
    s_mul_i32 s38, s48, {2*HW}
    s_add_u32 s38, s38, {MISC}
    v_add_u32 v38, s38, v5
    s_and_b32 s38, s2, 7
    s_lshl_b32 s38, s38, 12
    s_add_u32 s38, s38, {FX}
    v_and_b32 v5, 31, v0
    v_lshl_add_u32 v42, v5, 7, s38
    s_lshl_b32 s39, s52, 2
    s_add_u32 s39, s39, s54
    s_mul_i32 s39, s39, {28*128}
    s_add_u32 s39, s39, {FW}
    v_min_u32 v5, 27, v0
    v_lshl_add_u32 v39, v5, 7, s39
    s_lshl_b32 s44, s54, 10
    s_add_u32 s44, s44, 32768
    s_lshl_b32 s50, s22, 15
    s_add_u32 s50, s50, {CSP}
    v_and_b32 v8, 31, v0
    v_lshlrev_b32 v8, 4, v8
    v_lshl_add_u32 v8, s54, 9, v8
    v_lshl_add_u32 v47, v4, 3, v8
    v_add_u32 v47, {CST}, v47
    v_lshl_add_u32 v8, v4, 11, v8
    s_lshl_b32 s51, s21, 11
    s_add_u32 s51, s51, {STAT}
    v_and_b32 v9, 127, v2
    v_lshlrev_b32 v9, 4, v9
    v_mov_b32 v44, 0
    v_mov_b32 v45, 0
    v_mul_u32_u24 v12, {KSZ}, v4
    v_add_u32 v12, {KD-8}, v12""")
    Pc=L_(f"""v_lshrrev_b32 v5, 1, v2
    v_and_b32 v6, 1, v2
    v_lshlrev_b32 v40, 6, v5
    v_lshl_add_u32 v40, v6, 4, v40
    v_mul_u32_u24 v6, {USZ}, v6
    v_lshl_add_u32 v41, v5, 4, v6
    v_add_u32 v41, {UO+512}, v41
    s_mul_i32 s47, s48, {USZ}
    s_add_u32 s47, s47, {UO}
    v_sub_u32 v30, 15, v28
    v_and_b32 v31, 3, v30
    v_mul_u32_u24 v31, {TP}, v31
    v_lshrrev_b32 v30, 2, v30
    v_lshl_add_u32 v30, v30, 3, v31
    v_lshl_add_u32 v30, v29, 4, v30
    s_mul_i32 s38, s48, {TSZ}
    s_lshl_b32 s39, s49, 8
    s_sub_u32 s38, s38, s39
    s_add_u32 s38, s38, {TOE+256}
    v_add_u32 v30, s38, v30
    v_lshlrev_b32 v31, 5, v28
    v_lshl_add_u32 v31, v29, 4, v31
    s_sub_u32 s38, s47, s39
    s_add_u32 s38, s38, {512-32-192}
    v_add_u32 v31, s38, v31
    v_lshl_add_u32 v10, v0, 3, s47
    v_lshrrev_b32 v11, 3, v0
    v_mul_u32_u24 v11, {TP}, v11
    v_and_b32 v5, 7, v0
    v_bfe_u32 v6, v0, 4, 1
    v_sub_u32 v5, v5, v6
    v_lshl_add_u32 v11, v5, 2, v11""")
    KA=120; CS=192
    def csl():
        l=[(f's_add_u32 s40, s50, {4096*i}', f'buffer_load_dwordx4 {vr(CS+4*i,4)}, v8, {WS}, s40 offen sc1','c') for i in range(7)]
        return l+[('',f'buffer_load_dwordx4 {vr(CS+28,4)}, v9, {WS}, s51 offen sc1','c')]
    ko=[(sw,pl,q) for sw in range(2) for pl in range(2) for q in range(4)]
    hw=[f'ds_write_addtid_b32 v{HQ+k} offset:{MISC+k%21*LP+k//21*256}' for k in range(42)]
    def hr(n): k,mt=divmod(n,2); sw,pl,q=ko[k]; return f'ds_read_b128 {vr(48+4*(n%16),4)}, v38 offset:{sw*HW+16*mt*LP+pl*256+64*q}'
    def km(n): return f'v_mfma_f32_16x16x32_bf16 {vr(KA+4*(n&1),4)}, {vr(48+4*(n%16),4)}, {vr(128+4*(n//2),4)}, {"0" if n<2 else vr(KA+4*(n&1),4)}'
    def toe(c):
        l=[]
        for i in range(4):
            g=48+12*c+3*i; P=72+2*(i&1)+4*c; o=TOE-32768+c*TSZ+256*i
            l+=[f'v_lshl_or_b32 v{P}, v{g+1}, 16, v{g}', f'v_lshl_or_b32 v{P+1}, v{g+2}, 16, v{g+1}']
            l+=[f'ds_write_addtid_b32 v{P+(k&1)} offset:{o+k*TP-4*(k>>1)}' for k in range(4)]
        return l
    def mix(a,b):
        out=[]; j=0
        for i,x in enumerate(a):
            out.append(x); k=(i+1)*len(b)//len(a); out+=b[j:k]; j=k
        return out
    def tables():
        vwait(['c'])
        A(f's_mov_b32 s57, 0\ns_branch AC_1\nAC_0:\ns_mov_b64 exec, -1')
        for x in csl(): A(x[0]+'\n'+x[1])
        A('s_waitcnt vmcnt(0)\nAC_1:\ns_add_u32 s57, s57, 1')
        for r in list(range(CS+1,CS+28,2))+[CS+31]: A(f'v_cmpx_eq_u32 vcc, s20, v{r}')
        A(f's_nop 1\ns_cmp_eq_u64 exec, -1\ns_cbranch_scc1 AC_2\ns_cmp_lt_u32 s57, {SPIN}\ns_cbranch_scc1 AC_0\ns_mov_b64 exec, -1\nAC_2:')
        for st in (16,8,4):
            for r in range(0,st,2):
                if r+st<28: A(f'v_add_f32 v{CS+r}, v{CS+r}, v{CS+r+st}')
        A(f'v_permlane32_swap_b32 v{CS}, v{CS+2}\ns_nop 1\nv_add_f32 v{CS}, v{CS}, v{CS+2}')
        A(f"""v_add_u32 v9, {STT}, v9
        ds_write_b128 v9, {vr(CS+28,4)}
        v_cvt_pk_bf16_f32 v90, v{CS}, v{CS}
        v_and_b32 v90, 0xffff0000, v90
        v_sub_f32 v91, v{CS}, v90
        v_cvt_pk_bf16_f32 v92, v{CS}, v91
        v_and_b32 v90, 0xffff0000, v92
        v_sub_f32 v91, v91, v90
        v_cvt_pk_bf16_f32 v93, v91, 0
        ds_write_b64 v47, v[92:93]""")
    W=[[] for _ in range(13)]
    W[0]=['s_mov_b64 exec, s[42:43]']+[f'ds_read_b128 {vr(128+4*k,4)}, v37 offset:{sw*LW+pl*256+64*q}' for k,(sw,pl,q) in enumerate(ko)]+['s_mov_b64 exec, -1','D']
    PP=KH[hk+h0:]+Ps+Pc+Pg; W[0]+=KH[hk:hk+h0]; print('PP',len(PP))
    for i in range(7): W[1+i]=PP[i*len(PP)//7:(i+1)*len(PP)//7]
    W[8]=['ds_write_b32 v15, v44','ds_write_b32 v15, v44 offset:32']
    W[10]=hw[:h10]; W[11]=hw[h10:h10+h11]; hr_=hw[h10+h11:]
    W[12]=[hr(n) for n in range(15)]+[f's_setprio {ap}']+[f's_waitcnt lgkmcnt({min(14,31-n,13 if n>1 else 14-n)})\n'+km(n)+'\n'+(hr(n+14) if 0<n<18 else '') for n in range(32)]
    sc=[f'v_cvt_pk_bf16_f32 v{72+i}, v{KA+2*i}, v{KA+2*i+1}' for i in range(4)]+[f'ds_write_b16{"_d16_hi" if r&1 else ""} v{32+r}, v{72+r//2}' for r in range(4)]
    sc+=['s_mov_b32 exec_hi, 0\nds_write_b16 v36, v74 offset:2048\ns_mov_b32 exec_lo, 0xffff\nds_write_b16_d16_hi v36, v74 offset:2560\nds_write_b16 v36, v75 offset:3072\nds_write_b16_d16_hi v36, v75 offset:3584\ns_mov_b64 exec, -1','ds_write_b64 v12, v[44:45]']
    ga=[f'ds_read_u16 v{48+12*c+e}, v{16+e} offset:{c*KSZ}' for c in range(2) for e in range(12)]
    if nok: W=[[x for x in w if not x.startswith(('ds_','v_mfma'))] for w in W]
    D=sched([k for k in 'xug' if k not in GO],112)
    WR=list(range(224,256,8))+(list(range(256-8*NA,224,8)) if XB13 else list(range(192,224,8))+list(range(184,256-8*NA-8,-8)))
    ew=[int(x) for x in str(ew).split(',')]; wl=None
    D[0].append(rl)
    c=csl(); D[cs]+=[c[:4]]; D[cs+1]+=[c[4:]]
    D[fs-2].insert(0,[('',f'buffer_load_dword v43, v39, {WS}, 0 offen sc1','f')])
    W.append([]); D[13]=[]; ew.append(0)
    for s in range(13):
        M0[0]='s45' if s in (10,11) else None
        if M0[0]: A(f's_mov_b32 m0, {M0[0]}')
        dm=D[s]; seg=W[s]
        if s==12:
            A(f's_setprio {tp2}')
            A(f"""s_lshr_b32 s41, s53, 1
            s_lshl_b32 s41, s41, 14
            s_and_b32 s42, s53, 1
            s_lshl_b32 s42, s42, 5
            s_add_u32 s41, s41, s42
            s_add_u32 s41, s41, {XT}
            s_add_u32 s42, s41, 8192
            v_or_b32 v13, 16, v15""")
            if ts==12: tables()
            async_(V1,0); A.st('t1')
            vwait(['f']); A('v_cmp_ne_u32 vcc, s20, v43\ns_cbranch_vccz FX_OK'); poll(A,42,43); A('FX_OK:'); A.st('a6')
            emit([('',f'buffer_load_dwordx4 v[{112+4*i}:{115+4*i}], v40, {WS}, s{41+i} offen sc1','u') for i in range(2)])
            for _ in range(e12): emit([('',wl.pop(0),'d')])
            A('s_setprio 0')
            for x in hr_[:h12]: A(x)
            if hr_[h12:]:
                A('v_and_b32 v5, 0xffffffef, v15'); lpoll(A,V2,5); A(f's_setprio {tp2}')
                for x in hr_[h12:]: A(x)
            async_(V2); A(f's_setprio {tp2}')
            A.st('t2')
        if s==fs:
            vwait(['f']); L=A.label('FW'); A(f'v_cmp_ne_u32 vcc, s20, v43\ns_cbranch_vccz {L}'); poll(A,39,43); A(f'{L}:')
        if s==fs:
            wl=wdloads(A,NA,NG,WR,3,16*NA//7,NA//4,(58,59,60,61))
        if s==rs:
            vwait(['r']); A('s_mov_b32 s36, 0x05040100\ns_mov_b32 s37, 0x07060302')
            for di in range(2):
                for i in range(4): A(f'v_perm_b32 v{104+4*di+i}, v{97+2*i}, v{96+2*i}, s{36+di}')
                emit([('',f'buffer_store_dwordx4 {vr(104+4*di,4)}, v3, {WS}, s41 offen offset:{1024*di} sc1','t')])
        if s==rs+2: vwait(['t']); A(flag(A,58,1)); vm.append('g')
        if s==10: dm.append([('',f'buffer_load_dword v43, v42, {WS}, 0 offen sc1','f')])
        if s>=fs: dm+=[[('',wl.pop(0),'d')] for _ in range(ew[s-8])]
        if stg and dm and len(seg)>3:
            seg=[x for x in seg if x!='D']; n=len(seg); g=sum(dm,[]); dm=[]; v0=list(vm)
            for k in range(4):
                L=A.label('SG'); A(f's_cmp_lg_u32 s54, {k}\ns_cbranch_scc1 {L}'); vm[:]=v0; emit(g); A(f'{L}:')
                for x in seg[k*n//3:(k+1)*n//3]: A(x)
            seg=[]
        if 'D' not in seg and dm:
            n=len(seg); seg=list(seg)
            for i in reversed(range(len(dm))): seg.insert(i*n//len(dm),'D')
        for x in seg:
            if x=='D': emit(dm.pop(0))
            else: A(x)
        assert not dm
        if s==ts and s<12: tables()
        if s==12: break
        A.st(f'e{s}'); vwait([('w',s+1),('x',(s+1)//2)]+([('w',13)] if s==11 else [])); A('s_waitcnt lgkmcnt(0)')
        A.st(f'f{s}'); A('s_barrier'); A.st(f'g{s}')
    A.st('t3')
    for x in sc: A(x)
    A('s_mov_b32 m0, s44'); async_(V3,0)
    n=min(NW,len(wl)); k=[0]
    def wp():
        if k[0]<n: emit([('',wl.pop(0),'d')]); k[0]+=1
    wp(); wp()
    lpoll(A,V3,13)
    for x in ga: A(x)
    A(f'ds_write_b64 v10, v[44:45]\nds_write_b32 v11, v44 offset:{TOE+4096}')
    wp(); wp()
    A('s_waitcnt lgkmcnt(2)'); A.st('a7')
    for i,x in enumerate(toe(0)+toe(1)):
        A(x)
        if i%12==11: wp()
    vwait(['u']); A('ds_write_b128 v41, v[112:115]\nds_write_b128 v41, v[116:119] offset:2048')
    while k[0]<n: A(f's_waitcnt vmcnt({TH})'); wp()
    A("""v_mov_b32 v8, v28
    v_mov_b32 v9, v29
    v_mov_b32 v10, v30
    v_mov_b32 v11, v31""")
    A(f"""s_lshl_b32 s38, s54, 12
    s_add_u32 s38, s38, {EX}
    v_add_u32 v6, s38, v3
    v_xor_b32 v7, 4096, v6
    v_lshlrev_b32 v12, 5, v8
    v_lshl_add_u32 v12, v9, 3, v12
    s_lshl_b32 s38, s49, 11
    s_add_u32 s38, s38, s47
    v_add_u32 v12, s38, v12
    v_lshrrev_b32 v13, 2, v8
    v_mul_u32_u24 v13, {448*128}, v13
    v_and_b32 v8, 3, v8
    v_lshl_add_u32 v13, v8, 5, v13
    v_lshl_add_u32 v13, v9, 3, v13
    s_lshl_b32 s39, s53, 1
    s_add_u32 s39, s39, s48
    s_mul_i32 s44, s49, 448
    s_add_u32 s44, s44, s39
    s_lshl_b32 s44, s44, 7
    s_add_u32 s44, s44, {FS}
    s_mul_i32 s38, s49, {16*448}
    s_add_u32 s38, s38, s39
    s_lshl_b32 s38, s38, 7
    s_add_u32 s38, s38, {ST}
    v_subrev_u32 v4, 16, v14
    v_add_u32 v2, {112*1024}, v3""")
    A.st('b1'); async_(V4,0); A('v_or_b32 v5, 16, v15'); lpoll(A,V4,cw); A(f's_setprio {cp}'); A.st('a8')
    Y=16
    seq=[(g,m,b) for g in range(4) for m in range(8) for b in range(m,8)]
    need=[]; last={}
    for i,(g,m,b) in enumerate(seq):
        for f in (('A',g,m),('B',g,b-m)):
            if f not in last: need.append(f)
            last[f]=i
    pool=list(range(48,256-8*NA,4)); loc={}; iss={}; cnt=[0]; done=-1
    def rd():
        f=need.pop(0); r=pool.pop(0); loc[f]=r
        if f[0]=='A':
            o=(3-f[1])*64+(7-f[2])*512; A(f'ds_read_b64 {vr(r,2)}, v10 offset:{o}\nds_read_b64 {vr(r+2,2)}, v10 offset:{o+8}'); cnt[0]+=2
        else: A(f'ds_read_b128 {vr(r,4)}, v11 offset:{512*f[2]+64*(3-f[1])}'); cnt[0]+=1
        iss[f]=cnt[0]-1
    for _ in range(10): rd()
    for i,(g,m,b) in enumerate(seq):
        fa,fb=('A',g,m),('B',g,b-m)
        k=max(iss[fa],iss[fb])
        if k>done: A(f's_waitcnt lgkmcnt({cnt[0]-1-k})'); done=k
        A(f'v_mfma_f32_16x16x32_bf16 {vr(Y+4*b,4)}, {vr(loc[fa],4)}, {vr(loc[fb],4)}, {"0" if g==0 and m==0 else vr(Y+4*b,4)}')
        for f in (fa,fb):
            if last[f]==i: pool.append(loc[f])
        if need and pool and cnt[0]-1-done<13: rd()
    A.st('a9')
    def sepi():
        F=48
        for k in range(4): A(f'ds_read_b64 {vr(F+2*k,2)}, v12 offset:{512+512*k}')
        L=A.label('CV'); A(f's_cmp_eq_u32 s49, 0\ns_cbranch_scc1 {L}')
        for i in range(16): A(f'v_swap_b32 v{Y+i}, v{Y+16+i}')
        A(f'{L}:')
        for k in range(4): A(f'ds_write_b128 v6, {vr(Y+16+4*k,4)} offset:{k*1024}')
        async_(V5)
        for k in range(4): A(f'ds_read_b128 {vr(Y+16+4*k,4)}, v7 offset:{k*1024}')
        T=64
        for i in range(8): A(f'v_lshlrev_b32 v{T+2*i}, 16, v{F+i}\nv_and_b32 v{T+2*i+1}, 0xffff0000, v{F+i}')
        for i in range(16): A(f'v_mul_f32 v{T+i}, s46, v{T+i}')
        for i in range(8): A(f'v_cvt_pk_bf16_f32 v{F+i}, v{T+2*i}, v{T+2*i+1}')
        for i in range(8): A(f'v_lshlrev_b32 v{T+2*i}, 16, v{F+i}\nv_and_b32 v{T+2*i+1}, 0xffff0000, v{F+i}')
        async_(V6,0)
        for i in range(16): A(f'v_add_f32 v{Y+i}, v{Y+i}, v{Y+16+i}')
        for i in range(8): A(f'v_cvt_pk_bf16_f32 v{F+i}, v{Y+2*i}, v{Y+2*i+1}')
        for i in range(8): A(f'v_lshlrev_b32 v{Y+2*i}, 16, v{F+i}\nv_and_b32 v{Y+2*i+1}, 0xffff0000, v{F+i}')
        for i in range(16): A(f'v_add_f32 v{Y+i}, v{Y+i}, v{T+i}')
        for i in range(8): A(f'v_cvt_pk_bf16_f32 v{F+i}, v{Y+2*i}, v{Y+2*i+1}')
        for k in range(4): A(f's_add_u32 s39, s38, {k*4*448*128}\nbuffer_store_dwordx2 {vr(F+2*k,2)}, v13, {WS}, s39 offen sc1')
        A.st('b2')
    A(f's_setprio {sp}'); sepi()
    for x in wl: A(x)
    lpoll(A,V6)
    A(f'ds_read_b32 v1, v4\ns_waitcnt lgkmcnt(0)\nv_cmp_ne_u32 vcc, -1, v1\ns_cbranch_vccz A_J\ns_waitcnt vmcnt(0)'); A(flag(A,44,6)); lpoll(A,-1,4); A(f'A_J:\ns_setprio {a2p}'); A.st('a10')
    gemm2(A,NA,NG,WR,16,range(80,256-8*NA,8),3,2,11,fl=flag(A,44,6),pu=PA); A.st('b3')
    print('A stamps',A.names); assert A.cur<=10
    fin0(A,0)

def service(A):
    XP=960; XL=65536
    A(f'''SV:
    s_lshl_b32 s21, s21, 2
    s_add_u32 s21, s21, s22
    v_lshrrev_b32 v1, 3, v0
    v_and_b32 v2, 7, v0
    v_mul_u32_u24 v3, 896, v1
    v_lshl_add_u32 v4, v2, 4, v3
    s_lshl_b32 s23, s21, 3
    s_add_u32 s23, s23, s3
    s_mul_i32 s36, s23, {8*896}
    s_lshl_b32 s37, s3, 5
    s_add_u32 s37, s37, s21
    s_waitcnt lgkmcnt(0)
    s_load_dword s20, s[6:7], 0''')
    A.srd(24,4,XB)
    for i in range(7): A(f'buffer_load_dwordx4 {vr(16+4*i,4)}, v4, s[24:27], s36 offen offset:{128*i}')
    A.srd(16,6,WSZ)
    A(f'''v_bfe_u32 v6, v0, 2, 2
    v_bfe_u32 v8, v0, 4, 1
    v_and_b32 v9, 3, v0
    v_lshl_or_b32 v8, v8, 2, v9
    v_mul_u32_u24 v8, {8*XP+16}, v8
    v_mul_u32_u24 v6, {XP}, v6
    v_add_u32 v8, v8, v6
    v_lshrrev_b32 v7, 5, v0
    v_lshl_add_u32 v8, v7, 3, v8
    s_mul_i32 s42, s3, 112
    s_add_u32 s42, s42, {XL}
    v_add_u32 v14, s42, v8
    v_mul_u32_u24 v15, {XP}, v1
    v_lshl_add_u32 v15, v2, 4, v15
    s_mul_i32 s42, s3, {8*XP+16}
    s_add_u32 s42, s42, {XL}
    v_add_u32 v15, s42, v15
    v_mov_b32 v6, 0
    v_mov_b32 v7, 0
    s_mov_b32 s42, 0x3f803f80
    s_waitcnt lgkmcnt(0)''')
    nonce(A); A.stamp(1)
    for i in range(7):
        A(f's_waitcnt vmcnt({6-i})')
        for k in range(4): A(f'v_dot2_f32_bf16 v6, v{16+4*i+k}, s42, v6\nv_dot2_f32_bf16 v7, v{16+4*i+k}, v{16+4*i+k}, v7')
    for m in ('quad_perm:[1,0,3,2]','quad_perm:[2,3,0,1]','row_half_mirror'):
        for r in (6,7): A(f'v_add_f32_dpp v{r}, v{r}, v{r} {m} row_mask:0xf bank_mask:0xf')
    A(f'''v_mul_f32 v6, {fh(-1/448)}, v6
    v_mul_f32 v7, {fh(1/448)}, v7
    v_fma_f32 v7, -v6, v6, v7
    v_max_f32 v7, 0, v7
    v_cvt_pk_bf16_f32 v8, v6, v6
    v_and_b32 v6, 0xffff0000, v8''')
    bfr(A,7,7); A(f'v_add_f32 v7, {fh(1e-5)}, v7'); bfr(A,7,7); A('v_sqrt_f32 v7, v7'); bfr(A,10,7)
    A(f'''v_rcp_f32 v7, v10
    v_mov_b32 v11, s20
    v_mov_b32 v60, v7
    v_lshlrev_b32 v3, 4, v1
    v_mul_f32 v9, {hex(NLOG2E)}, v7
    s_lshl_b32 s42, s23, 7
    s_add_u32 s42, s42, {STAT}
    v_cmp_eq_u32 vcc, 0, v2
    s_mov_b64 exec, vcc
    buffer_store_dwordx4 v[8:11], v3, {WS}, s42 offen sc1
    s_mov_b64 exec, -1''')
    A.stamp(2)
    for i in range(7):
        T=44+8*(i&1)
        for k in range(4): A(f'v_lshlrev_b32 v{T+2*k}, 16, v{16+4*i+k}\nv_and_b32 v{T+2*k+1}, 0xffff0000, v{16+4*i+k}')
        for k in range(4): A(f'v_pk_add_f32 {vr(T+2*k,2)}, {vr(T+2*k,2)}, v[6:7] op_sel_hi:[1,0]')
        for k in range(4): A(f'v_cvt_pk_bf16_f32 v{16+4*i+k}, v{T+2*k}, v{T+2*k+1}')
        for k in range(4): A(f'v_lshlrev_b32 v{T+2*k}, 16, v{16+4*i+k}\nv_and_b32 v{T+2*k+1}, 0xffff0000, v{16+4*i+k}')
        for k in range(4): A(f'v_pk_mul_f32 {vr(T+2*k,2)}, {vr(T+2*k,2)}, v[60:61] op_sel_hi:[1,0]')
        for k in range(4): A(f'v_cvt_pk_bf16_f32 v{16+4*i+k}, v{T+2*k}, v{T+2*k+1}')
        A(f'ds_write_b128 v15, {vr(16+4*i,4)} offset:{128*i}')
    A.stamp(3)
    A('s_waitcnt lgkmcnt(0)\ns_barrier'); A.stamp(4)
    for i in range(7):
        for p in range(2): A(f'ds_read_b64_tr_b16 {vr(16+4*i+2*p,2)}, v14 offset:{16*i+4*XP*p}')
    A(f'''v_and_b32 v4, 31, v0
    v_lshlrev_b32 v4, 4, v4
    v_lshrrev_b32 v5, 5, v0
    v_lshl_add_u32 v4, v5, 14, v4
    s_mul_i32 s42, s3, {14*16384}
    s_lshl_b32 s43, s21, 9
    s_add_u32 s42, s42, s43
    s_add_u32 s42, s42, {XT}
    s_lshl_b32 s46, s37, 7
    s_add_u32 s46, s46, {FX}''')
    for i in range(7): A(f's_waitcnt lgkmcnt({12-2*i})\nbuffer_store_dwordx4 {vr(16+4*i,4)}, v4, {WS}, s42 offen sc1\ns_add_u32 s42, s42, 32768')
    A('s_waitcnt vmcnt(0)'); A(flag(A,46,5)); A.stamp(5)
    A(f'''s_cmp_lg_u32 s21, 0
    s_cbranch_scc1 SV_3
    s_and_b32 s42, s3, 3
    v_lshl_add_u32 v4, s42, 6, v0
    v_mov_b32 v5, {FZ}
    v_mov_b32 v6, {FX-224*128}
    v_cmp_gt_u32 vcc, 224, v4
    v_cndmask_b32 v5, v6, v5, vcc
    v_lshl_add_u32 v4, v4, 7, v5''')
    poll(A,4,5)
    A('s_barrier\ns_cmp_lg_u32 s3, 0\ns_cbranch_scc1 SV_3\ns_mov_b32 s42, 0'); A(flag(A,42,5))
    A('SV_3:'); A.dump(1,6); A('s_endpgm')

def build(prof=False, en='a2,a3,a4,g6,g12,a7,a8,a9,b2,a10', **kw):
    A=Asm(); A.prof=prof; A.en=en.split(','); n=NAME+'_kernel'; A.begin(n); A.stamp0()
    A(f"""s_cmp_ge_u32 s2, 256
    s_cbranch_scc1 KEND
    s_load_dwordx2 s[4:5], s[0:1], 0
    s_load_dwordx2 s[6:7], s[0:1], 120
    s_load_dwordx8 s[8:15], s[0:1], 80
    s_getpc_b64 s[24:25]
    PCREF:
    v_lshlrev_b32 v2, 6, v0
    v_min_u32 v2, CODEEND-PCREF-4, v2
    v_mov_b32 v3, s25
    v_add_co_u32 v2, vcc, s24, v2
    v_addc_co_u32 v3, vcc, 0, v3, vcc
    global_load_dword v127, v[2:3], off
    v_lshrrev_b32 v1, 6, v0
    v_and_b32 v0, 63, v0
    v_readfirstlane_b32 s3, v1
    s_and_b32 s21, s2, 7
    s_lshr_b32 s22, s2, 3
    s_cmp_lt_u32 s22, 4
    s_cbranch_scc1 SV
    s_load_dwordx16 s[36:51], s[0:1], 8
    s_sub_u32 s22, s22, 4
    s_mul_i32 s53, s21, 28
    s_add_u32 s53, s53, s22
    s_mul_i32 s55, s22, 37
    s_lshr_b32 s55, s55, 8
    s_mul_i32 s56, s55, 7
    s_sub_u32 s52, s22, s56
    s_lshl_b32 s23, s21, 2
    s_add_u32 s23, s23, s55
    s_and_b32 s22, s21, 1
    s_mul_i32 s22, s22, 7
    s_add_u32 s22, s22, s52
    s_lshr_b32 s21, s21, 1
    s_lshl_b32 s21, s21, 2
    s_add_u32 s21, s21, s55
    s_and_b32 s54, s3, 3""")
    dmaprep(A)
    A(f"""v_lshl_add_u32 v2, s54, 6, v0
    s_lshl_b32 s57, s53, 10
    v_lshl_add_u32 v3, v2, 2, s57
    s_lshl_b32 s57, s53, 2
    s_mov_b32 s26, {XB}
    s_mov_b32 s27, 0x20000
    s_mov_b32 s30, {WB}
    s_mov_b32 s31, 0x20000
    s_mov_b32 s34, {WB}
    s_mov_b32 s35, 0x20000
    s_mov_b32 s18, {WSZ}
    s_mov_b32 s19, 0x20000
    s_cmp_lt_u32 s3, 4
    s_waitcnt lgkmcnt(0)
    global_load_dword v{PR}, v3, s[36:37] nt
    global_load_dword v{PR+1}, v3, s[38:39] nt
    s_cbranch_scc1 P_G""")
    for i in range(2,6): A(f'global_load_dword v{PR+i}, v3, s[{36+2*i}:{37+2*i}] nt')
    A(f"""P_G:
    s_load_dword s100, s[48:49], s57
    s_load_dword s101, s[50:51], s57
    s_load_dword s20, s[6:7], 0
    s_mov_b32 s24, s4
    s_and_b32 s25, s5, 0xffff
    s_mov_b32 s28, s8
    s_and_b32 s29, s9, 0xffff
    s_mov_b32 s32, s10
    s_and_b32 s33, s11, 0xffff
    s_mov_b32 s16, s6
    s_and_b32 s17, s7, 0xffff
    s_cmp_lt_u32 s3, 4
    s_cbranch_scc1 GW""")
    kg={k:kw.pop(k) for k in ('gp','NE','xm','gs','th','gw','es','tp','g2p','gv','gm','ep','gf') if k in kw}
    awave(A,**kw); final(A,12); A('KEND:\ns_endpgm'); gwave(A,**kg); service(A); A('CODEEND:')
    A.end(n,256,102)
    A.launches.append(f'; @launch grid=(256,1,1) block=(512,1,1) lds={LDS}')
    A.lines,tot=haz.fix(A.lines); print('nops',tot,'lines',len(A.lines))
    return A.text()
if __name__=='__main__':
    kw={k:(int(v) if v.isdigit() else v) for k,v in (a.split('=') for a in sys.argv[2:])}
    for k in ('PRE','NR','PG','PA','NG','RR','GO','ROT','XB13'):
        if k in kw: globals()[k]=kw.pop(k)
    NA=28-NG
    open(sys.argv[1],'w').write(build(**kw))
```

```python
import sys, struct; sys.path.insert(0,'work')
from gen import *
import haz
def fh(x): return hex(struct.unpack('<I',struct.pack('<f',x))[0])
XB=2048*896; WB=448*3584
LOG2E=0x3fb8aa3b; NLOG2E=0xbfb8aa3b
FH=0x10000; FW=0x110000; FX=0x38000; FS=0x40000; CSP=0x80000; STAT=0x100000
XT=0x200000; WD=0x400000; ST=0x600000; HH=0x800000; WSZ=0x1000000
KP=272; XR=0; LOA=32768; LP=528; LW=31*LP; MISC=49152; HW=21*LP; GR=98304; LDS=163840
TOE=MISC; TP=4160; TSZ=4*TP; KD=TOE+2*TSZ+16; KSZ=4864; CST=93568; STT=CST+2048; SYNC=STT+2048; SL=KD
UO=16384; USZ=4608; EX=32768; FZ=0x60000
NG=14; NA=28-NG; RR=0; XB13=0; GO=''; ROT=0; KD=32768+16
HS='sc1'; SR=0; PH=0; PF=0; PRE=1; NR=8; PG=6; PA=6
V1,V2,V3,V4,V5,V6=1,2,3,4,5,6
WS='s[16:19]'
SPIN=20000
BL=''
def bfr(A, d, s): A(f'v_cvt_pk_bf16_f32 v{d}, v{s}, v{s}\nv_and_b32 v{d}, 0xffff0000, v{d}')
def interleave(*ls):
    out=[]; ls=[list(l) for l in ls]
    while any(ls):
        for l in ls:
            if l: out.append(l.pop(0))
    return out
def poll(A, va, vt, first_issued=False, mid=''):
    L=A.label('PL'); D=A.label('PD')
    A(f's_mov_b32 s57, 0')
    if not first_issued: A(f'buffer_load_dword v{vt}, v{va}, {WS}, 0 offen sc1')
    A(f's_waitcnt vmcnt(0)\n{mid}\nv_cmp_ne_u32 vcc, s20, v{vt}\ns_cbranch_vccz {D}\n{L}:')
    A(f'buffer_load_dword v{vt}, v{va}, {WS}, 0 offen sc1\ns_add_u32 s57, s57, 1\ns_waitcnt vmcnt(0)\nv_cmp_ne_u32 vcc, s20, v{vt}\ns_cbranch_vccz {D}\ns_cmp_lt_u32 s57, {SPIN}\ns_cbranch_scc1 {L}\n{D}:')
def flag(A, soff, vt):
    return f's_mov_b64 exec, 1\nv_mov_b32 v{vt}, s20\nbuffer_store_dword v{vt}, off, {WS}, s{soff} sc1\ns_mov_b64 exec, -1'
def nonce(A): A('s_mul_i32 s20, s20, 0x9e3779b1\ns_add_u32 s20, s20, 0x7f4a7c15')

def gemm2(A, n, k0, WDR, ACC, HR, vl, vl2, st, pre='', mid='', fl='', lb=0, vt=5, pu=10):
    A(f'''s_mul_i32 s40, s23, {2*112}
    s_mul_i32 s41, s54, 28
    s_add_u32 s40, s40, s41
    s_add_u32 s40, s40, {k0+HH//1024}
    s_add_u32 s41, s40, {n}
    s_add_u32 s42, s40, s36
    s_lshl_b32 s40, s40, 10
    s_lshl_b32 s41, s41, 10
    s_lshl_b32 s42, s42, 10''')
    free=list(HR); nr=min(len(free),n,NR); loc={}; q=[]; assert n-nr<=8
    A(f's_lshl_b32 s43, s54, 14\ns_add_u32 s43, s43, {lb}\nv_add_u32 v{vt}, s43, v{vl}')
    def ld(i):
        if i>=n: return
        q.extend([i]*2)
        for t,v in enumerate((vl,vl2)):
            if i<nr:
                if not t: loc[i]=free.pop(0)
                A(f'buffer_load_dwordx4 {vr(loc[i]+4*t,4)}, v{v}, {WS}, s42 offen')
            else: A(f's_add_u32 m0, s43, {(i-nr)*2048+t*1024}\nbuffer_load_dwordx4 v{v}, {WS}, s42 offen lds')
        if i<n-1: A('s_add_u32 s42, s42, 1024\ns_cmp_eq_u32 s42, s41\ns_cselect_b32 s42, s40, s42')
    for i in range(pu): ld(i)
    if fl: A(f's_waitcnt vmcnt({len(q)})'); A(fl); q.append('f')
    if pre: A(pre); q.append('p')
    vw=lambda i: A(f's_waitcnt vmcnt({len(q)-1-max(j for j,t in enumerate(q) if t==i)})')
    for i in range(n):
        if i<nr: vw(i)
        else: A('s_waitcnt lgkmcnt(0)')
        if i==0: A.stamp(st)
        if nr<=i+1<n:
            vw(i+1); loc[i+1]=free.pop(0)
            for t in range(2): A(f'ds_read_b128 {vr(loc[i+1]+4*t,4)}, v{vt} offset:{(i+1-nr)*2048+t*1024}')
        for ti in range(2):
            for di in range(2):
                a=ACC+16*(2*ti+di)
                A(f'v_mfma_f32_32x32x16_bf16 {vr(a,16)}, {vr(WDR[i]+4*di,4)}, {vr(loc[i]+4*ti,4)}, {"0" if i==0 else vr(a,16)}')
        free.append(loc[i])
        if i==5: finp(A,0); q.append('x'); assert pu+i<n and all(r in WDR[:5] for r in (224,232,240,248))
        ld(pu+i)
def wdloads(A, n, k0, regs, vl, mul, qm, R=(55,96,97,98)):
    A(f'''s_mul_i32 s36, s52, {mul}
    s_lshr_b32 s36, s36, 4
    s_and_b32 s{R[0]}, s23, 3
    s_mul_i32 s{R[0]}, s{R[0]}, {qm}
    s_add_u32 s36, s36, s{R[0]}
    s_cmp_ge_u32 s36, {n}
    s_cselect_b32 s{R[0]}, {n}, 0
    s_sub_u32 s36, s36, s{R[0]}
    s_mul_i32 s{R[1]}, s52, 112
    s_mul_i32 s{R[2]}, s54, 28
    s_add_u32 s{R[1]}, s{R[1]}, s{R[2]}
    s_add_u32 s{R[1]}, s{R[1]}, {k0+WD//2048}
    s_add_u32 s{R[2]}, s{R[1]}, {n}
    s_add_u32 s{R[3]}, s{R[1]}, s36
    s_lshl_b32 s{R[1]}, s{R[1]}, 11
    s_lshl_b32 s{R[2]}, s{R[2]}, 11
    s_lshl_b32 s{R[3]}, s{R[3]}, 11''')
    l=[]
    for i in range(n):
        for di in range(2): l.append(f'buffer_load_dwordx4 {vr(regs[i]+4*di,4)}, v{vl}, {WS}, s{R[3]} offen offset:{1024*di} {BL}'+(f'\ns_add_u32 s{R[3]}, s{R[3]}, 2048\ns_cmp_eq_u32 s{R[3]}, s{R[2]}\ns_cselect_b32 s{R[3]}, s{R[1]}, s{R[3]}' if di and i<n-1 else ''))
    return l

def lpoll(A, val, va=15, vt=1):
    L=A.label('AS')
    A(f's_mov_b32 s57, 0\n{L}:\nds_read_b32 v{vt}, v{va}\ns_add_u32 s57, s57, 1\ns_waitcnt lgkmcnt(0)\nv_cmp_gt_u32 vcc, {val}, v{vt}\ns_cbranch_vccz {L}x\ns_cmp_lt_u32 s57, {SPIN*16}\ns_cbranch_scc1 {L}\n{L}x:')
def finp(A, g):
    A.srd(24,4,XB); A.srd(28,14,XB)
    A(f'''v_lshrrev_b32 v242, 3, v0
    v_and_b32 v243, 7, v0
    s_lshl_b32 s38, s3, 3
    s_lshl_b32 s39, s23, 6
    s_add_u32 s39, s39, s38
    s_mul_i32 s39, s39, 896
    s_lshl_b32 s47, s52, 7
    s_add_u32 s39, s39, s47
    v_mul_u32_u24 v236, 896, v242
    v_lshl_add_u32 v236, v243, 4, v236
    buffer_load_dwordx4 v[232:235], v236, s[24:27], s39 offen
    v_and_b32 v225, 31, v0
    v_lshrrev_b32 v224, 5, v0
    v_and_b32 v226, 1, v0
    v_xor_b32 v224, v224, v243
    v_lshl_or_b32 v224, v226, 3, v224
    v_lshlrev_b32 v224, 4, v224
    v_lshl_or_b32 v224, v225, 8, v224
    v_add_u32 v224, s43, v224''')
    for k in range(1,8): A(f'v_xor_b32 v{224+k}, {32*k}, v224')
    A(f'''v_and_b32 v237, 1, v242
    v_lshl_or_b32 v237, v237, 3, v242
    v_xor_b32 v237, v237, v243
    v_lshlrev_b32 v237, 4, v237
    v_add_u32 v242, s38, v242
    v_lshl_or_b32 v237, v242, 8, v237
    v_xor_b32 v238, 128, v237
    v_add_u32 v239, {GR}, v237
    v_add_u32 v240, {GR}, v238
    v_mul_u32_u24 v241, 1040, v243
    v_lshl_add_u32 v241, v242, 1, v241
    v_add_u32 v241, {SL}, v241
    v_mov_b32 v242, {hex(NLOG2E)}
    v_mov_b32 v243, {hex(NLOG2E)}''')
    for i in range(8): A(f'v_mov_b32 v{244+i}, 0')
def fin0(A, g):
    ACC=16
    for ti in range(2):
        for di in range(2):
            for q in range(4): A(f'ds_write_b128 v{224+4*di+q}, {vr(ACC+16*(2*ti+di)+4*q,4)} offset:{8192*ti}')
def final(A, st):
    R=96; S=244; X=160
    A('FINAL:')
    for i in range(0,8,2): A(f'v_lshlrev_b32 v{X+i}, 16, v{232+i//2}\nv_and_b32 v{X+1+i}, 0xffff0000, v{232+i//2}')
    A('s_waitcnt lgkmcnt(0)')
    A.stamp(st)
    A('s_barrier')
    A.stamp(st+1)
    NP=5 if PRE else 8; kk=1 if PRE else 3
    for k in range(NP):
        for hf in range(2): A(f'ds_read_b128 {vr(R+8*k+4*hf,4)}, v{237+2*(k>>2)+hf} offset:{16384*(k&3)}')
    for k in range(1,NP):
        A(f's_waitcnt lgkmcnt({min(15,2*NP-2-2*k+(8 if k>kk else 0))})')
        for i in range(0,8,2): A(f'v_pk_add_f32 {vr(R+i,2)}, {vr(R+i,2)}, {vr(R+8*k+i,2)}')
        if k==kk:
            for e in range(8): A(f'ds_read_u16_d16_hi v{S+e}, v241 offset:{128*e}')
    T=24
    for i in range(0,8,2): A(f'v_cvt_pk_bf16_f32 v{T+i}, v{R+i//2}, v{R+4+i//2}')
    for i in range(0,8,2): A(f'v_lshlrev_b32 v{R+i}, 16, v{T+i}\nv_and_b32 v{R+i+1}, 0xffff0000, v{T+i}')
    for i in range(0,8,2): A(f'v_pk_mul_f32 {vr(T+i,2)}, {vr(R+i,2)}, v[242:243]')
    for i in range(8): A(f'v_exp_f32 v{T+i}, v{T+i}')
    for i in range(0,8,2): A(f'v_pk_add_f32 {vr(T+i,2)}, {vr(T+i,2)}, 1.0 op_sel_hi:[1,0]')
    for i in range(8): A(f'v_rcp_f32 v{T+i}, v{T+i}')
    for i in range(0,8,2): A(f'v_pk_mul_f32 {vr(R+i,2)}, {vr(R+i,2)}, {vr(T+i,2)}')
    for i in range(0,8,2): A(f'v_cvt_pk_bf16_f32 v{T+i}, v{R+i}, v{R+i+1}')
    for i in range(0,8,2): A(f'v_lshlrev_b32 v{R+i}, 16, v{T+i}\nv_and_b32 v{R+i+1}, 0xffff0000, v{T+i}')
    A('s_waitcnt lgkmcnt(0)')
    for i in range(0,8,2): A(f'v_pk_mul_f32 {vr(R+i,2)}, {vr(R+i,2)}, {vr(S+i,2)}')
    for i in range(0,8,2): A(f'v_cvt_pk_bf16_f32 v{T+i}, v{R+i}, v{R+i+1}')
    for i in range(0,8,2): A(f'v_lshlrev_b32 v{R+i}, 16, v{T+i}\nv_and_b32 v{R+i+1}, 0xffff0000, v{T+i}')
    for i in range(0,8,2): A(f'v_pk_add_f32 {vr(R+i,2)}, {vr(R+i,2)}, {vr(X+i,2)}')
    for i in range(0,8,2): A(f'v_cvt_pk_bf16_f32 v{T+i//2}, v{R+i}, v{R+i+1}')
    A(f'buffer_store_dwordx4 {vr(T,4)}, v236, s[28:31], s39 offen')
    A.dump(0,st+2)

ROTC=['s_mov_b32 s59, s21', 's_and_b32 s59, s21, 3\ns_lshl_b32 s59, s59, 2\ns_lshr_b32 s97, s21, 2\ns_or_b32 s59, s59, s97',
 's_and_b32 s59, s21, 1\ns_lshl_b32 s59, s59, 3\ns_lshr_b32 s97, s21, 1\ns_or_b32 s59, s59, s97']
def dmaprep(A):
    A(f"""v_lshrrev_b32 v4, 3, v0
    v_lshrrev_b32 v5, 4, v0
    v_and_b32 v6, 7, v0
    v_xor_b32 v6, v6, v5
    v_mul_u32_u24 v112, 896, v4
    v_lshl_add_u32 v112, v6, 4, v112
    v_xor_b32 v113, 64, v112
    v_add_u32 v113, 7168, v113
    v_and_b32 v6, 15, v0
    v_lshlrev_b32 v7, 2, v5
    v_xor_b32 v6, v6, v7
    v_mul_u32_u24 v114, 3584, v5
    v_lshl_add_u32 v114, v6, 4, v114
    v_add_u32 v115, 14336, v114
    s_mul_i32 s55, s21, {128*896}
    s_mul_i32 s96, s54, 14336
    s_add_u32 s55, s55, s96
    s_lshl_b32 s56, s22, 7
    s_add_u32 s56, s56, s96
    s_lshl_b32 s56, s56, 1
    s_lshl_b32 s96, s54, 11
    s_add_u32 s98, s55, 896
    s_add_u32 s99, s56, {448*3584}
    {ROTC[ROT]}
    s_lshr_b32 s97, s59, 2
    s_lshl_b32 s97, s97, 1
    s_add_u32 s97, s97, {'s52' if RR else 0}
    s_cmp_ge_u32 s97, 7
    s_cselect_b32 s57, 7, 0
    s_sub_u32 s97, s97, s57
    s_lshl_b32 s57, s97, 7
    s_add_u32 s55, s55, s57
    s_mul_i32 s57, s97, {64*3584}
    s_add_u32 s56, s56, s57""")
ADVX='s_add_u32 s55, s55, 128\ns_cmp_eq_u32 s55, s98\ns_cselect_b32 s57, 896, 0\ns_sub_u32 s55, s55, s57'
ADVW=f's_add_u32 s56, s56, {32*3584}\ns_cmp_eq_u32 s56, s99\ns_cselect_b32 s57, {448*3584}, 0\ns_sub_u32 s56, s56, s57'
def dmax(j,h,V=112):
    l=[(f's_add_u32 m0, s96, {XR+(j%3)*16384+8192*h+1024*i}', f'buffer_load_dwordx4 v{V+i}, s[24:27], s{100 if h else 55} offen lds', ('x',j)) for i in range(2)]
    if h: l[0]=(f's_add_u32 s100, s55, {64*896}\n'+l[0][0],)+l[0][1:]; l[1]=(l[1][0],l[1][1]+'\n'+ADVX,l[1][2])
    return l
def dmaw(s,V=112,ks=(1,0)):
    l=[(f's_add_u32 m0, s96, {GR+32768*k+((s+1)%4)*8192+1024*i}', f'buffer_load_dwordx4 v{V+2+i}, {sr(28+4*k,4)}, s56 offen lds', ('w',s)) for k in ks for i in range(2)]
    if l: l[-1]=(l[-1][0],l[-1][1]+'\n'+ADVW,l[-1][2])
    return l
def sched(own,V):
    D={s:[] for s in range(13)}; ks=tuple(k for k in (1,0) if 'gu'[k] in own)
    for s in range(1,11):
        w=dmaw(s+3,V,ks)
        for i,k in enumerate(ks): D[s].append(w[2*i:2*i+2])
    if 'x' in own:
        xs=[dmax(j,h,V) for j in range(2,7) for h in range(2)]
        D[1]+=xs[:2]
        for s in range(2,10): D[s].append(xs[s])
    return D

PR=120; DT=126
def pkc(o,z,w): return [f'v_pk_mul_f32 {vr(o,2)}, {vr(z,2)}, {vr(w,2)}', f'v_pk_mul_f32 {vr(o+2,2)}, {vr(z,2)}, {vr(w+2,2)}', f'v_pk_fma_f32 {vr(o,2)}, {vr(z+2,2)}, {vr(w+2,2)}, {vr(o,2)} neg_lo:[1,0,0] neg_hi:[1,0,0]', f'v_pk_fma_f32 {vr(o+2,2)}, {vr(z+2,2)}, {vr(w,2)}, {vr(o+2,2)}']
def unp(d,n,dt):
    l=[]
    for i in range(2): l+=[f'v_lshlrev_b32 v{d+2*i}, 16, v{n+i}', f'v_and_b32 v{d+2*i+1}, 0xffff0000, v{n+i}']
    if dt: l+=[f'v_pk_mul_f32 {vr(d+2*i,2)}, {vr(d+2*i,2)}, {vr(DT,2)} op_sel_hi:[1,0]' for i in range(2)]
    return l
def cexp(o,t,P,lg):
    l=[f'v_mul_f32 v{t+i}, {hex((0x3e22f983 if i>1 else LOG2E)+(lg<<23))}, v{P+i}' for i in (2,3,0,1)]
    l+=[f'v_fract_f32 v{t+i}, v{t+i}' for i in (2,3)]+[f'v_exp_f32 v{t+i}, v{t+i}' for i in (0,1)]
    l+=[f'v_cos_f32 v{o+i}, v{t+2+i}' for i in (0,1)]+[f'v_sin_f32 v{o+2+i}, v{t+2+i}' for i in (0,1)]
    return l+[f'v_pk_mul_f32 {vr(o+2*i,2)}, {vr(o+2*i,2)}, {vr(t,2)}' for i in range(2)]
def dtcalc(A):
    A(f"""s_lshr_b32 s57, s54, 1
    s_lshl_b32 s57, s57, 4
    s_lshr_b32 s100, s100, s57
    s_lshl_b32 s100, s100, 16
    s_lshr_b32 s101, s101, s57
    v_mov_b32 v{DT}, {hex(LOG2E)}
    v_mul_f32 v{DT}, s100, v{DT}
    v_exp_f32 v{DT}, v{DT}""")
    bfr(A,DT,DT); nonce(A)
def kgen_lo():
    P,T,E=128,132,[0,136,140,144,148]; Q=184
    def put(row,z,q): return [f'v_cvt_pk_bf16_f32 v{q}, v{z}, v{z+1}', f'v_cvt_pk_bf16_f32 v{q+1}, v{z+2}, v{z+3}', f'ds_write_addtid_b32 v{q} offset:{LOA+(row-1)*LP}', f'ds_write_addtid_b32 v{q+1} offset:{LOA+(row-1)*LP+256}']
    out=unp(P,PR,1)+cexp(E[1],T,P,3)+interleave(pkc(E[2],E[1],E[1]),put(1,E[1],Q))+interleave(pkc(E[4],E[2],E[2]),pkc(E[3],E[2],E[1]),put(2,E[2],Q+2))
    ch=[]
    for b in (1,2,3,4):
        l=put(b,E[b],Q+2*b-2) if b>2 else []; z=E[b]
        for n,j in enumerate(range(b+4,32,4)):
            o=152+8*(b-1)+4*(n&1); l+=pkc(o,z,E[4])+put(j,o,Q+2*b-2); z=o
        ch.append(l)
    return out+interleave(*ch)
HQ=48
def kgen_hi():
    P,B,C,T1,T2,E1,G=192,196,200,204,208,216,220; H=[224+4*i for i in range(8)]
    hc=lambda k,z: [f'v_cvt_pk_bf16_f32 v{HQ+k}, v{z}, v{z+1}', f'v_cvt_pk_bf16_f32 v{HQ+21+k}, -v{z+2}, -v{z+3}']
    out=unp(P,PR,1)+interleave(cexp(E1,T1,P,0),cexp(G,T2,P,8),unp(B,PR+2,1)+unp(C,PR+4,0)+pkc(H[0],C,B))
    a=hc(0,H[0]); b=[]; c=[]
    for k in range(1,8): a+=pkc(H[k],H[k-1],E1)+hc(k,H[k])
    z=H[0]
    for n,row in enumerate((8,12,14,16,17,18,19,20)):
        o=192+4*(n&1); b+=pkc(o,z,G)+hc(row,o); z=o
    z=H[4]
    for n,row in enumerate((10,13,15)):
        o=200+4*(n&1); c+=pkc(o,z,G)+hc(row,o); z=o
    d=pkc(208,H[2],G)+hc(9,208)+pkc(212,H[6],G)+hc(11,212)
    return out+interleave(a,b[:30])+interleave(c,d,b[30:])

def gwave(A, gp=1, NE=0, xm=100, gs=0, th=1, gw=4, es=21, tp=0, g2p=0, gv=1, gm=27, ep=1, gf=0, st=0):
    gc=[0]; st0=A.stamp
    def gst(): gc[0]+=1; st0(gc[0])
    if gs: A.stamp=lambda i: st0(i) if i>10 else None
    A(f"""GW:
    s_and_b32 s39, s3, 1""")
    for x in dmax(0,0)+dmax(0,1): A((x[0]+'\n'+x[1]).replace('s100','s58'))
    if tp:
        A(f"""s_cmp_eq_u32 s39, 0
        s_cselect_b32 s40, s28, s32
        s_cselect_b32 s41, s29, s33
        s_mov_b32 s42, s30
        s_mov_b32 s43, s31
        s_and_b32 s44, s21, 3
        s_lshl_b32 s44, s44, 3
        s_lshl_b32 s45, s97, 6
        s_add_u32 s44, s44, s45
        s_add_u32 s44, s44, 32
        v_lshrrev_b32 v4, 4, v0
        v_lshl_add_u32 v4, v4, 5, s44
        v_bfe_u32 v5, v0, 1, 3
        v_add_u32 v4, v4, v5
        v_subrev_u32 v5, 448, v4
        v_min_u32 v4, v4, v5
        v_mul_u32_u24 v4, 3584, v4
        v_and_b32 v5, 1, v0
        v_lshl_add_u32 v4, v5, 7, v4
        s_lshl_b32 s44, s22, 8
        s_cmp_lt_u32 s3, 2
        s_cbranch_scc1 TP_W
        s_mov_b32 s40, s24
        s_mov_b32 s41, s25
        s_mov_b32 s42, s26
        s_add_u32 s45, s97, s3
        s_sub_u32 s45, s45, 1
        s_cmp_ge_u32 s45, 7
        s_cselect_b32 s44, 7, 0
        s_sub_u32 s45, s45, s44
        s_lshl_b32 s45, s45, 7
        s_mul_i32 s44, s21, {128*896}
        s_add_u32 s44, s44, s45
        s_mul_i32 s45, s52, 19
        v_min_u32 v4, 18, v0
        v_add_u32 v4, s45, v4
        v_min_u32 v4, 127, v4
        v_mul_u32_u24 v4, 896, v4
        TP_W:
        buffer_load_dword v209, v4, s[40:43], s44 offen""")
    A.stamp(1)
    pro=f"""v_and_b32 v4, 31, v0
    v_lshrrev_b32 v7, 5, v0
    v_bfe_u32 v6, v0, 1, 3
    v_xor_b32 v5, v7, v6
    s_lshl_b32 s40, s39, 13
    s_add_u32 s40, s40, {XR}
    v_lshl_add_u32 v10, v4, 7, s40
    v_lshl_add_u32 v8, v5, 4, v10
    v_xor_b32 v9, 32, v8
    v_xor_b32 v10, 64, v8
    v_xor_b32 v11, 96, v8
    v_bfe_u32 v6, v0, 2, 2
    v_lshl_add_u32 v5, v7, 3, v6
    v_lshlrev_b32 v5, 8, v5
    v_bfe_u32 v3, v0, 4, 1
    v_lshl_add_u32 v5, v3, 5, v5
    v_and_b32 v3, 3, v0
    v_lshl_add_u32 v5, v3, 3, v5
    v_add_u32 v5, {GR}, v5
    s_and_b32 s40, s3, 2
    v_xor_b32 v6, s40, v6
    v_lshl_add_u32 v12, v6, 6, v5
    v_xor_b32 v13, 64, v12
    v_add_u32 v14, 32768, v12
    v_add_u32 v15, 32768, v13
    s_lshl_b32 s40, s40, 8
    s_add_u32 s41, s40, {CST}
    v_lshl_add_u32 v204, v4, 3, s41
    s_lshl_b32 s41, s39, 10
    s_add_u32 s40, s40, s41
    s_add_u32 s41, s41, {STT}
    v_lshl_add_u32 v205, v4, 4, s41
    v_mov_b32 v200, 0x3f803f80
    v_mov_b32 v201, v200
    v_mov_b32 v202, v200
    v_mov_b32 v203, v200
    v_lshlrev_b32 v2, 4, v0
    v_add_u32 v1, {112*1024}, v2
    v_lshlrev_b32 v6, 3, v0
    v_cmp_gt_u32 vcc, 32, v0
    s_and_b32 s43, s59, 3
    s_mov_b32 s42, s59
    s_cmp_ge_u32 s42, 14
    s_cselect_b32 s43, 32, s43
    s_lshl_b32 s45, s22, 4
    s_add_u32 s42, s42, s45
    s_lshl_b32 s42, s42, 11
    s_add_u32 s42, s42, s40
    s_add_u32 s42, s42, {CSP}
    s_lshl_b32 s43, s43, 1
    s_add_u32 s43, s43, s39
    s_lshl_b32 s45, s53, 7
    s_add_u32 s45, s45, {FZ}
    s_lshl_b32 s37, s21, 1
    s_add_u32 s37, s37, s39
    s_mul_i32 s44, s37, 28
    s_mul_i32 s37, s37, 224
    s_lshl_b32 s38, s22, 1
    s_lshr_b32 s40, s3, 1
    s_add_u32 s38, s38, s40
    s_add_u32 s44, s44, s38
    s_lshl_b32 s44, s44, 7
    s_add_u32 s44, s44, {FH}
    s_lshl_b32 s38, s38, 2
    s_add_u32 s37, s37, s38
    s_lshl_b32 s37, s37, 10
    s_add_u32 s37, s37, {HH}
    s_add_u32 s38, s37, {112*1024}
    s_mul_i32 s40, s23, 28
    s_mul_i32 s41, s54, 7
    s_add_u32 s40, s40, s41
    s_lshl_b32 s40, s40, 7
    s_add_u32 s40, s40, {FH}
    v_min_u32 v3, 6, v0
    v_lshl_add_u32 v4, v3, 7, s40
    s_lshl_b32 s40, s3, 2
    s_add_u32 s40, s40, {SYNC}
    v_mov_b32 v7, s40
    s_mul_i32 s46, s54, {LW}
    s_mov_b32 m0, s46
    s_waitcnt lgkmcnt(0)"""
    A(pro); dtcalc(A)
    A(f'v_and_b32 v214, 3, v0\nv_lshlrev_b32 v214, 2, v214\nv_add_u32 v214, {SYNC+16}, v214')
    WR=list(range(216,256,8))+list(range(128,216,8)); WR=WR[:NG]
    wl=wdloads(A,NG,0,WR,2,16*NG//7,NG//4,(58,59,60,61))
    A('\n'.join([ADVX]+[ADVW]*4+[f'v_mov_b32 v{210+i}, v{112+i}' for i in range(4)]))
    D=sched(GO,210); vm=[]; dq=[]
    A.stamp(2); A(f's_waitcnt vmcnt({4+tp})'); A.stamp(3)
    for x in kgen_lo(): A(x)
    FR=16; ACC=64
    def reads(step):
        s,ks=divmod(step,2); o=((s+1)%4)*8192; b=FR+24*(step&1); out=[]
        for ti in range(2): out.append(f'ds_read_b128 {vr(b+4*ti,4)}, v{8+(step&3)} offset:{(step//4%3)*16384+ti*4096}')
        for gu in range(2):
            for fi in range(2):
                for p in range(2): out.append(f'ds_read_b64_tr_b16 {vr(b+8+8*gu+4*fi+2*p,2)}, v{12+2*gu+fi} offset:{o+ks*4096+p*1024}')
        return out
    def mfmas(step):
        b=FR+24*(step&1); out=[]
        for ti in (1,0):
            for fi in (1,0):
                for gu in range(2):
                    a=ACC+16*(4*ti+2*fi+gu)
                    out.append(f'v_mfma_f32_32x32x16_bf16 {vr(a,16)}, {vr(b+8+8*gu+4*fi,4)}, {vr(b+4*ti,4)}, {"0" if step==0 else vr(a,16)}')
        return out
    A(f's_setprio {gp}\ns_waitcnt vmcnt({tp}) lgkmcnt(0)'); A.stamp(4); A('s_barrier'); A.stamp(5)
    for r in reads(0): A(r)
    SV=192; vd=-1
    for step in range(29):
        if gs and gs<=step<gs+4: gst()
        A('s_waitcnt lgkmcnt(0)')
        if gs and gs<=step<gs+4: gst()
        nxt=step+1
        if step==gm: A(f'v_mov_b32 v213, {V2}\nds_write_b32 v7, v213')
        if nxt<26 and nxt%2==0:
            idx=[i for i,t in enumerate(vm) if t in (('w',nxt//2),('x',nxt//4))]
            if idx and max(idx)>vd: vd=max(idx); A(f's_waitcnt vmcnt({len(vm)-1-vd})')
            A('s_barrier')
            if gs and gs<=step<gs+4: gst()
        if step==0 or step&1 and nxt<26:
            assert not dq
            dq=sum(D[nxt//2],[]); per=len(dq) if step==0 else (len(dq)+1)//2
        slots=((),(5,),(4,6),(3,5,7),(1,3,5,7))[per]
        if nxt<28: rd=reads(nxt)+(['ds_read_b32 v215, v214'] if nxt==27 else [])
        elif nxt==28:
            A(f's_mov_b32 s57, 0\ns_branch GT_1\nGT_0:\nds_read_b32 v215, v214\ns_add_u32 s57, s57, 1\ns_waitcnt lgkmcnt(0)\nGT_1:\nv_cmp_gt_u32 s[62:63], {V1}, v215\ns_nop 1\ns_cmp_eq_u64 s[62:63], 0\ns_cbranch_scc1 GT_2\ns_cmp_lt_u32 s57, {SPIN*16}\ns_cbranch_scc1 GT_0\nGT_2:')
            b=FR; rd=[f'ds_read_b128 {vr(SV+4*ti,4)}, v205 offset:{512*ti}' for ti in range(2)]
            rd+=[f'ds_read_b64 {vr(b+8+8*gu+4*fi,2)}, v204 offset:{1024*gu+256*fi}' for gu in range(2) for fi in range(2)]
            rd+=[f'v_mov_b32 v{b+r}, 0\nv_mov_b32 v{b+r+1}, 0' for r in (2,6,10,14,18,22)]
        else:
            rd=[]
            for ti in range(2): A(f'v_cndmask_b32 v{FR+4*ti}, 0, v{SV+4*ti}, vcc\nv_and_b32 v{FR+4*ti+1}, 0xffff, v{FR+4*ti}')
            rd=[f'v_mov_b32 v{S}, v{S+1}\nv_mov_b32 v{S+3}, v{S+2}' for S in (SV,SV+4)]
        for i,m in enumerate(mfmas(step)):
            if i in slots and dq: A(dq[0][0])
            A(m)
            if i in slots and dq: x=dq.pop(0); A(x[1]); vm.append(x[2])
            for r in rd[2*i:2*i+2]: A(r)
            if step>=es and i in (2,6) and 2*NG-len(wl)<NE: A(wl.pop(0))
            if step<8 and i in (5,6):
                gu=i-5; L=A.label('CS'); b=FR+24*(step&1)
                A(f's_cmp_eq_u32 s43, {(step&~1)+gu}\ns_cbranch_scc0 {L}')
                for fi in range(2): A(f'v_mfma_f32_32x32x16_bf16 {vr(224+16*fi,16)}, v[200:203], {vr(b+8+8*gu+4*fi,4)}, {vr(224+16*fi,16) if step&1 else "0"}')
                A(f'{L}:')
            if step==8 and i==5:
                A(f's_cmp_ge_u32 s43, 14\ns_cbranch_scc1 CS_X\nv_cndmask_b32 v206, v240, v224, vcc\nv_mov_b32 v207, s20\nbuffer_store_dwordx2 v[206:207], v6, {WS}, s42 offen sc1\nCS_X:')
            if step==9 and i==5:
                A('s_cmp_lg_u32 s3, 0\ns_cbranch_scc1 CS_Y'); A(flag(A,45,208)); A('CS_Y:')
    A.stamp(6); A(f's_setprio {ep}')
    for ti in (1,0):
        S=SV+4*ti
        for fi in (1,0):
            g=ACC+16*(4*ti+2*fi); u=g+16
            for i in range(0,16,2): A(f'v_pk_mul_f32 {vr(g+i,2)}, {vr(g+i,2)}, {vr(S,2)}')
            for i in range(16): A(f'v_exp_f32 v{g+i}, v{g+i}')
            for i in range(0,16,2): A(f'v_pk_fma_f32 {vr(g+i,2)}, {vr(g+i,2)}, {vr(S+2,2)}, {vr(S+2,2)}')
            for i in range(16): A(f'v_rcp_f32 v{g+i}, v{g+i}')
            for i in range(0,16,2): A(f'v_pk_mul_f32 {vr(u+i,2)}, {vr(u+i,2)}, {vr(g+i,2)}')
            if (ti,fi)==(0,0): A('ds_write_b32 v7, v200')
            for i in range(0,16,2): A(f'v_cvt_pk_bf16_f32 v{g+i//2}, v{u+i}, v{u+i+1}')
            for k in range(2): A(f'buffer_store_dwordx4 {vr(g+4*k,4)}, v2, {WS}, s{37+ti} offen offset:{fi*2048+k*1024} {HS}')
    A.stamp(7)
    A(f's_setprio {g2p}\nv_add_u32 v8, 16, v7\nds_read_b32 v5, v8\ns_waitcnt lgkmcnt(0)\nv_cmp_gt_u32 vcc, {gv}, v5\ns_cbranch_vccz G_F\ns_waitcnt vmcnt(0)'); A(flag(A,44,5)); lpoll(A,gv,8,5); A('G_F:')
    for x in wl[:gw]: A(x)
    if st: A(f'v_and_b32 v9, 31, v0\nv_lshlrev_b32 v9, 7, v9\nv_lshrrev_b32 v10, 5, v0\nv_mul_u32_u24 v10, {112*1024}, v10\nv_add_u32 v9, v9, v10\ns_lshr_b32 s46, s21, 1\ns_and_b32 s47, s2, 7')
    A(f's_waitcnt vmcnt({gw})'); A(flag(A,44,5)); A.stamp(8)
    if st:
        assert not gf
        A(f's_cmp_{"lg" if st==1 else "eq"}_u32 s46, s47\ns_cbranch_scc1 G_S\nbuffer_load_dword v10, v9, {WS}, s37 offen\nG_S:')
    wl=wl[gw:]; gf=min(gf,len(wl))
    for x in wl[:len(wl)-gf]: A(x)
    if gf: A(f'buffer_load_dword v9, v4, {WS}, 0 offen sc1')
    for x in wl[len(wl)-gf:]: A(x)
    A(f"""s_lshr_b32 s46, s23, 4
    s_mul_i32 s46, s46, 448
    s_lshl_b32 s47, s52, 6
    s_lshl_b32 s48, s3, 4
    s_add_u32 s47, s47, s48
    s_add_u32 s46, s46, s47
    s_lshl_b32 s46, s46, 7
    s_add_u32 s46, s46, {FS}
    v_and_b32 v3, 15, v0
    v_lshl_add_u32 v3, v3, 7, s46
    s_mul_i32 s46, s23, 448
    s_add_u32 s46, s46, s47
    s_lshl_b32 s46, s46, 7
    s_add_u32 s46, s46, {ST}
    s_mul_i32 s47, s3, 2080
    s_add_u32 s47, s47, {SL}
    v_add_u32 v14, s47, v2
    v_mov_b32 v13, v2
    s_mul_i32 s48, s52, {-(-NA*8//7)}
    v_and_b32 v12, 31, v0
    v_min_u32 v12, {-(-NA*8//7)-1}, v12
    v_add_u32 v12, s48, v12
    v_min_u32 v12, {NA*8-1}, v12
    v_lshlrev_b32 v12, 7, v12
    v_lshrrev_b32 v11, 5, v0
    v_mul_u32_u24 v11, {112*1024}, v11
    v_add_u32 v12, v12, v11
    v_and_b32 v15, 3, v0
    v_lshlrev_b32 v15, 2, v15
    v_add_u32 v15, {SYNC}, v15""")
    lpoll(A,V3,15,5); A.stamp(9)
    if gf: A(f's_waitcnt vmcnt({gf})\nv_cmp_ne_u32 vcc, s20, v9\ns_cbranch_vccz G_H')
    poll(A,4,5); A('G_H:\nv_mov_b32 v5, -1\nds_write_b32 v7, v5'); A.stamp(10)
    gemm2(A,NG,0,WR,16,[r for r in range(80,216,8) if r not in WR],2,1,11,f'buffer_load_dword v11, v12, {WS}, s41 offen' if th else '', lb=GR, vt=5, pu=PG)
    A.stamp(1); A(f'buffer_load_dword v4, v3, {WS}, 0 offen sc1')
    fin0(A,1)
    if PRE: A(f's_lshl_b32 s40, s3, 2\ns_add_u32 s40, s40, {SYNC+32}\nv_mov_b32 v6, s40\nv_add_u32 v15, 32, v15\ns_waitcnt lgkmcnt(0)\nds_write_b32 v6, v6')
    A.stamp(2); poll(A,3,4,True); A.stamp(3)
    A(f"""buffer_load_dwordx4 v[84:87], v13, {WS}, s46 offen sc1
    buffer_load_dwordx4 v[88:91], v13, {WS}, s46 offen offset:1024 sc1""")
    if PRE:
        lpoll(A,1,15,6); R=96
        for k in range(4):
            for j in range(4): A(f'ds_read_b128 {vr(R+16*k+4*j,4)}, v{239+(j&1)} offset:{16384*k+8192*(j>>1)}')
        for k in range(1,4):
            A(f's_waitcnt lgkmcnt({12-4*k})')
            for i in range(0,16,2): A(f'v_pk_add_f32 {vr(R+i,2)}, {vr(R+i,2)}, {vr(R+16*k+i,2)}')
        for j in range(4): A(f'ds_write_b128 v{239+(j&1)}, {vr(R+4*j,4)} offset:{8192*(j>>1)}')
    A(f"""s_waitcnt vmcnt(1)
    ds_write_b128 v14, v[84:87]
    s_waitcnt vmcnt(0)
    ds_write_b128 v14, v[88:91] offset:1040
    s_branch FINAL""")
    A.stamp=st0

def awave(A, ap=2, cp=0, NW=99, TH=8, wm=90, ew='0,0,4,4,8', stg=0, nok=0, w1=2, rs=3, fs=10, cs=9, ts=12, kd=10, sp=2, h10=0, h11=12, cw=15, tp2=2, h12=10, e12=0, a2p=0, hk=999, h0=0):
    A.cur=0; A.names=[]
    def async_(v,w=1):
        A(f's_waitcnt lgkmcnt(0)\nv_mov_b32 v1, {v}\nds_write_b32 v14, v1')
        if w: lpoll(A,v)
    vm=[]; M0=['s45']
    def emit(g):
        for x in g: A(x[0]+'\n'+x[1]); vm.append(x[2])
        if M0[0]: A(f's_mov_b32 m0, {M0[0]}')
    def vwait(tags):
        idx=[i for i,t in enumerate(vm) if t in tags]
        if idx: A(f's_waitcnt vmcnt({len(vm)-1-max(idx)})')
    L_=lambda t:[x.strip() for x in t.split('\n') if x.strip()]
    A('AW:'); A.st('a0'); M0[0]=None; emit(dmaw(0)+(dmaw(1) if w1==0 else [])); A.st('a1')
    A(ADVX)
    A(f"""s_lshr_b32 s48, s54, 1
    s_and_b32 s49, s54, 1
    v_and_b32 v28, 15, v0
    v_lshrrev_b32 v29, 4, v0
    v_mul_u32_u24 v5, {LP}, v28
    v_lshl_add_u32 v5, v29, 4, v5
    s_mul_i32 s38, s48, {2*LW}
    s_mul_i32 s39, s49, {16*LP}
    s_add_u32 s38, s38, s39
    s_add_u32 s38, s38, {LOA-LP}
    v_add_u32 v37, s38, v5
    s_mul_i32 s45, s54, {HW}
    s_cmp_eq_u32 s49, 0
    s_cselect_b32 s42, 0xfffefffe, -1
    s_mov_b32 s43, s42
    v_lshlrev_b32 v3, 4, v0
    s_cmp_ge_u32 s53, 196
    s_cselect_b32 s38, 196, 0
    s_sub_u32 s38, s53, s38
    s_mul_i32 s39, s38, 293
    s_lshr_b32 s39, s39, 11
    s_mul_i32 s40, s39, 7
    s_sub_u32 s38, s38, s40
    s_lshl_b32 s39, s39, 2
    s_add_u32 s39, s39, s54
    s_mul_i32 s36, s39, {16*896}
    s_lshl_b32 s40, s38, 7
    s_add_u32 s36, s36, s40
    s_add_u32 s37, s36, {8*896}
    s_mul_i32 s38, s38, 112
    s_add_u32 s38, s38, s39
    s_lshl_b32 s41, s38, 11
    s_add_u32 s41, s41, {WD}
    s_lshl_b32 s58, s38, 7
    s_add_u32 s58, s58, {FW}
    v_lshrrev_b32 v4, 5, v0
    v_and_b32 v5, 31, v0
    v_mul_u32_u24 v46, 3584, v4
    v_lshl_add_u32 v46, v5, 2, v46""")
    A.srd(8,12,WB); rl=[('',f'buffer_load_dword v{96+e}, v46, s[8:11], s{36+e//4} offen offset:{896*(e&3)} nt','r') for e in range(8)]
    for k in range(64): A(f'v_mov_b32 v{128+k}, {0 if k&16 else "0x3f803f80"}')
    if w1==1: emit(dmaw(1))
    A('s_waitcnt lgkmcnt(0)')
    dtcalc(A); A('s_lshl_b32 s46, s101, 16')
    A.st('a2'); A(f's_waitcnt vmcnt({len(vm)})'); A.st('a3')
    pd=(dmaw(1) if w1==2 else [])+dmax(1,0)+dmax(1,1)+dmaw(2)+dmaw(3)
    KH=kgen_hi(); print('kgen_hi',len(KH))
    for i,x in enumerate(KH[:hk]):
        if kd and i%kd==0 and pd: emit([pd.pop(0)])
        A(x)
    A.st('a4'); emit(pd)
    A.st('a5'); vwait([('w',0)]); A('s_barrier')
    eo=[128*i+k for i in range(4) for k in range(3)]
    Pg=L_(f"""s_mov_b32 s38, {KD}
    s_lshl_b32 s39, s54, 9
    v_lshl_add_u32 v5, v0, 1, s39
    v_sub_u32 v5, 2047, v5
    v_cvt_f32_u32 v5, v5""")
    for e in range(0,12,2):
        Pg+=L_(f"""v_add_f32 v6, {fh(-eo[e])}, v5
        v_add_f32 v7, {fh(-eo[e+1])}, v5
        v_cvt_pk_bf16_f32 v6, v6, v7
        v_and_b32 v7, 0xffff0000, v6
        v_lshlrev_b32 v6, 16, v6
        v_cvt_i32_f32 v6, v6
        v_cvt_i32_f32 v7, v7
        v_lshl_add_u32 v{16+e}, v6, 1, s38
        v_lshl_add_u32 v{17+e}, v7, 1, s38""")
    Ps=L_(f"""s_lshl_b32 s38, s3, 2
    s_add_u32 s38, s38, {SYNC}
    v_mov_b32 v14, s38
    v_and_b32 v15, 7, v0
    v_lshlrev_b32 v15, 2, v15
    v_add_u32 v15, {SYNC}, v15
    s_mul_i32 s38, s48, {KSZ}
    s_lshl_b32 s39, s49, 8
    s_add_u32 s38, s38, s39
    s_add_u32 s38, s38, {KD}
    v_lshl_add_u32 v7, v28, 4, s38
    v_lshl_add_u32 v36, v29, 11, v7
    v_max_u32 v5, 1, v29
    v_lshlrev_b32 v6, v5, 1
    v_lshlrev_b32 v5, 9, v5
    v_subrev_u32 v5, 512, v5
    v_lshlrev_b32 v8, 3, v29
    v_cmp_gt_u32 vcc, 32, v0
    v_cndmask_b32 v5, v5, v8, vcc
    v_add_u32 v32, v7, v5
    v_add_u32 v33, v32, v6
    v_lshlrev_b32 v8, 1, v6
    v_mov_b32 v9, 512
    v_cmp_gt_u32 vcc, 48, v0
    v_cndmask_b32 v8, v9, v8, vcc
    v_add_u32 v34, v32, v8
    v_add_u32 v35, v33, v8
    v_mul_u32_u24 v5, {LP}, v28
    v_lshl_add_u32 v5, v29, 4, v5
    s_mul_i32 s38, s48, {2*HW}
    s_add_u32 s38, s38, {MISC}
    v_add_u32 v38, s38, v5
    s_and_b32 s38, s2, 7
    s_lshl_b32 s38, s38, 12
    s_add_u32 s38, s38, {FX}
    v_and_b32 v5, 31, v0
    v_lshl_add_u32 v42, v5, 7, s38
    s_lshl_b32 s39, s52, 2
    s_add_u32 s39, s39, s54
    s_mul_i32 s39, s39, {28*128}
    s_add_u32 s39, s39, {FW}
    v_min_u32 v5, 27, v0
    v_lshl_add_u32 v39, v5, 7, s39
    s_lshl_b32 s44, s54, 10
    s_add_u32 s44, s44, 32768
    s_lshl_b32 s50, s22, 15
    s_add_u32 s50, s50, {CSP}
    v_and_b32 v8, 31, v0
    v_lshlrev_b32 v8, 4, v8
    v_lshl_add_u32 v8, s54, 9, v8
    v_lshl_add_u32 v47, v4, 3, v8
    v_add_u32 v47, {CST}, v47
    v_lshl_add_u32 v8, v4, 11, v8
    s_lshl_b32 s51, s21, 11
    s_add_u32 s51, s51, {STAT}
    v_and_b32 v9, 127, v2
    v_lshlrev_b32 v9, 4, v9
    v_mov_b32 v44, 0
    v_mov_b32 v45, 0
    v_mul_u32_u24 v12, {KSZ}, v4
    v_add_u32 v12, {KD-8}, v12""")
    Pc=L_(f"""v_lshrrev_b32 v5, 1, v2
    v_and_b32 v6, 1, v2
    v_lshlrev_b32 v40, 6, v5
    v_lshl_add_u32 v40, v6, 4, v40
    v_mul_u32_u24 v6, {USZ}, v6
    v_lshl_add_u32 v41, v5, 4, v6
    v_add_u32 v41, {UO+512}, v41
    s_mul_i32 s47, s48, {USZ}
    s_add_u32 s47, s47, {UO}
    v_sub_u32 v30, 15, v28
    v_and_b32 v31, 3, v30
    v_mul_u32_u24 v31, {TP}, v31
    v_lshrrev_b32 v30, 2, v30
    v_lshl_add_u32 v30, v30, 3, v31
    v_lshl_add_u32 v30, v29, 4, v30
    s_mul_i32 s38, s48, {TSZ}
    s_lshl_b32 s39, s49, 8
    s_sub_u32 s38, s38, s39
    s_add_u32 s38, s38, {TOE+256}
    v_add_u32 v30, s38, v30
    v_lshlrev_b32 v31, 5, v28
    v_lshl_add_u32 v31, v29, 4, v31
    s_sub_u32 s38, s47, s39
    s_add_u32 s38, s38, {512-32-192}
    v_add_u32 v31, s38, v31
    v_lshl_add_u32 v10, v0, 3, s47
    v_lshrrev_b32 v11, 3, v0
    v_mul_u32_u24 v11, {TP}, v11
    v_and_b32 v5, 7, v0
    v_bfe_u32 v6, v0, 4, 1
    v_sub_u32 v5, v5, v6
    v_lshl_add_u32 v11, v5, 2, v11""")
    KA=120; CS=192
    def csl():
        l=[(f's_add_u32 s40, s50, {4096*i}', f'buffer_load_dwordx4 {vr(CS+4*i,4)}, v8, {WS}, s40 offen sc1','c') for i in range(7)]
        return l+[('',f'buffer_load_dwordx4 {vr(CS+28,4)}, v9, {WS}, s51 offen sc1','c')]
    ko=[(sw,pl,q) for sw in range(2) for pl in range(2) for q in range(4)]
    hw=[f'ds_write_addtid_b32 v{HQ+k} offset:{MISC+k%21*LP+k//21*256}' for k in range(42)]
    def hr(n): k,mt=divmod(n,2); sw,pl,q=ko[k]; return f'ds_read_b128 {vr(48+4*(n%16),4)}, v38 offset:{sw*HW+16*mt*LP+pl*256+64*q}'
    def km(n): return f'v_mfma_f32_16x16x32_bf16 {vr(KA+4*(n&1),4)}, {vr(48+4*(n%16),4)}, {vr(128+4*(n//2),4)}, {"0" if n<2 else vr(KA+4*(n&1),4)}'
    def toe(c):
        l=[]
        for i in range(4):
            g=48+12*c+3*i; P=72+2*(i&1)+4*c; o=TOE-32768+c*TSZ+256*i
            l+=[f'v_lshl_or_b32 v{P}, v{g+1}, 16, v{g}', f'v_lshl_or_b32 v{P+1}, v{g+2}, 16, v{g+1}']
            l+=[f'ds_write_addtid_b32 v{P+(k&1)} offset:{o+k*TP-4*(k>>1)}' for k in range(4)]
        return l
    def mix(a,b):
        out=[]; j=0
        for i,x in enumerate(a):
            out.append(x); k=(i+1)*len(b)//len(a); out+=b[j:k]; j=k
        return out
    def tables():
        vwait(['c'])
        A(f's_mov_b32 s57, 0\ns_branch AC_1\nAC_0:\ns_mov_b64 exec, -1')
        for x in csl(): A(x[0]+'\n'+x[1])
        A('s_waitcnt vmcnt(0)\nAC_1:\ns_add_u32 s57, s57, 1')
        for r in list(range(CS+1,CS+28,2))+[CS+31]: A(f'v_cmpx_eq_u32 vcc, s20, v{r}')
        A(f's_nop 1\ns_cmp_eq_u64 exec, -1\ns_cbranch_scc1 AC_2\ns_cmp_lt_u32 s57, {SPIN}\ns_cbranch_scc1 AC_0\ns_mov_b64 exec, -1\nAC_2:')
        for st in (16,8,4):
            for r in range(0,st,2):
                if r+st<28: A(f'v_add_f32 v{CS+r}, v{CS+r}, v{CS+r+st}')
        A(f'v_permlane32_swap_b32 v{CS}, v{CS+2}\ns_nop 1\nv_add_f32 v{CS}, v{CS}, v{CS+2}')
        A(f"""v_add_u32 v9, {STT}, v9
        ds_write_b128 v9, {vr(CS+28,4)}
        v_cvt_pk_bf16_f32 v90, v{CS}, v{CS}
        v_and_b32 v90, 0xffff0000, v90
        v_sub_f32 v91, v{CS}, v90
        v_cvt_pk_bf16_f32 v92, v{CS}, v91
        v_and_b32 v90, 0xffff0000, v92
        v_sub_f32 v91, v91, v90
        v_cvt_pk_bf16_f32 v93, v91, 0
        ds_write_b64 v47, v[92:93]""")
    W=[[] for _ in range(13)]
    W[0]=['s_mov_b64 exec, s[42:43]']+[f'ds_read_b128 {vr(128+4*k,4)}, v37 offset:{sw*LW+pl*256+64*q}' for k,(sw,pl,q) in enumerate(ko)]+['s_mov_b64 exec, -1','D']
    PP=KH[hk+h0:]+Ps+Pc+Pg; W[0]+=KH[hk:hk+h0]; print('PP',len(PP))
    for i in range(7): W[1+i]=PP[i*len(PP)//7:(i+1)*len(PP)//7]
    W[8]=['ds_write_b32 v15, v44','ds_write_b32 v15, v44 offset:32']
    W[10]=hw[:h10]; W[11]=hw[h10:h10+h11]; hr_=hw[h10+h11:]
    W[12]=[hr(n) for n in range(15)]+[f's_setprio {ap}']+[f's_waitcnt lgkmcnt({min(14,31-n,13 if n>1 else 14-n)})\n'+km(n)+'\n'+(hr(n+14) if 0<n<18 else '') for n in range(32)]
    sc=[f'v_cvt_pk_bf16_f32 v{72+i}, v{KA+2*i}, v{KA+2*i+1}' for i in range(4)]+[f'ds_write_b16{"_d16_hi" if r&1 else ""} v{32+r}, v{72+r//2}' for r in range(4)]
    sc+=['s_mov_b32 exec_hi, 0\nds_write_b16 v36, v74 offset:2048\ns_mov_b32 exec_lo, 0xffff\nds_write_b16_d16_hi v36, v74 offset:2560\nds_write_b16 v36, v75 offset:3072\nds_write_b16_d16_hi v36, v75 offset:3584\ns_mov_b64 exec, -1','ds_write_b64 v12, v[44:45]']
    ga=[f'ds_read_u16 v{48+12*c+e}, v{16+e} offset:{c*KSZ}' for c in range(2) for e in range(12)]
    if nok: W=[[x for x in w if not x.startswith(('ds_','v_mfma'))] for w in W]
    D=sched([k for k in 'xug' if k not in GO],112)
    WR=list(range(224,256,8))+(list(range(256-8*NA,224,8)) if XB13 else list(range(192,224,8))+list(range(184,256-8*NA-8,-8)))
    ew=[int(x) for x in str(ew).split(',')]; wl=None
    if SR: W[0].remove('D'); rs=99
    else: D[0].append(rl)
    c=csl(); D[cs]+=[c[:4]]; D[cs+1]+=[c[4:]]
    D[fs-2].insert(0,[('',f'buffer_load_dword v43, v39, {WS}, 0 offen sc1','f')])
    W.append([]); D[13]=[]; ew.append(0)
    for s in range(13):
        M0[0]='s45' if s in (10,11) else None
        if M0[0]: A(f's_mov_b32 m0, {M0[0]}')
        dm=D[s]; seg=W[s]
        if s==12:
            A(f's_setprio {tp2}')
            A(f"""s_lshr_b32 s41, s53, 1
            s_lshl_b32 s41, s41, 14
            s_and_b32 s42, s53, 1
            s_lshl_b32 s42, s42, 5
            s_add_u32 s41, s41, s42
            s_add_u32 s41, s41, {XT}
            s_add_u32 s42, s41, 8192
            v_or_b32 v13, 16, v15""")
            if ts==12: tables()
            async_(V1,0); A.st('t1')
            vwait(['f']); A('v_cmp_ne_u32 vcc, s20, v43\ns_cbranch_vccz FX_OK'); poll(A,42,43); A('FX_OK:'); A.st('a6')
            emit([('',f'buffer_load_dwordx4 v[{112+4*i}:{115+4*i}], v40, {WS}, s{41+i} offen sc1','u') for i in range(2)])
            for _ in range(e12): emit([('',wl.pop(0),'d')])
            A('s_setprio 0')
            for x in hr_[:h12]: A(x)
            if hr_[h12:]:
                A('v_and_b32 v5, 0xffffffef, v15'); lpoll(A,V2,5); A(f's_setprio {tp2}')
                for x in hr_[h12:]: A(x)
            async_(V2); A(f's_setprio {tp2}')
            A.st('t2')
        if s==fs:
            vwait(['f']); L=A.label('FW'); A(f'v_cmp_ne_u32 vcc, s20, v43\ns_cbranch_vccz {L}'); poll(A,39,43); A(f'{L}:')
        if s==fs:
            wl=wdloads(A,NA,NG,WR,3,16*NA//7,NA//4,(58,59,60,61))
        if s==rs:
            vwait(['r']); A('s_mov_b32 s36, 0x05040100\ns_mov_b32 s37, 0x07060302')
            for di in range(2):
                for i in range(4): A(f'v_perm_b32 v{104+4*di+i}, v{97+2*i}, v{96+2*i}, s{36+di}')
                emit([('',f'buffer_store_dwordx4 {vr(104+4*di,4)}, v3, {WS}, s41 offen offset:{1024*di} sc1','t')])
        if s==rs+2: vwait(['t']); A(flag(A,58,1)); vm.append('g')
        if s==10: dm.append([('',f'buffer_load_dword v43, v42, {WS}, 0 offen sc1','f')])
        if s>=fs: dm+=[[('',wl.pop(0),'d')] for _ in range(ew[s-8])]
        if stg and dm and len(seg)>3:
            seg=[x for x in seg if x!='D']; n=len(seg); g=sum(dm,[]); dm=[]; v0=list(vm)
            for k in range(4):
                L=A.label('SG'); A(f's_cmp_lg_u32 s54, {k}\ns_cbranch_scc1 {L}'); vm[:]=v0; emit(g); A(f'{L}:')
                for x in seg[k*n//3:(k+1)*n//3]: A(x)
            seg=[]
        if 'D' not in seg and dm:
            n=len(seg); seg=list(seg)
            for i in reversed(range(len(dm))): seg.insert(i*n//len(dm),'D')
        for x in seg:
            if x=='D': emit(dm.pop(0))
            else: A(x)
        assert not dm
        if s==ts and s<12: tables()
        if s==12: break
        A.st(f'e{s}'); vwait([('w',s+1),('x',(s+1)//2)]+([('w',13)] if s==11 else [])); A('s_waitcnt lgkmcnt(0)')
        A.st(f'f{s}'); A('s_barrier'); A.st(f'g{s}')
    A.st('t3')
    for x in sc: A(x)
    A('s_mov_b32 m0, s44'); async_(V3,0)
    n=min(NW,len(wl)); k=[0]
    def wp():
        if k[0]<n: emit([('',wl.pop(0),'d')]); k[0]+=1
    wp(); wp()
    lpoll(A,V3,13)
    for x in ga: A(x)
    A(f'ds_write_b64 v10, v[44:45]\nds_write_b32 v11, v44 offset:{TOE+4096}')
    wp(); wp()
    A('s_waitcnt lgkmcnt(2)'); A.st('a7')
    for i,x in enumerate(toe(0)+toe(1)):
        A(x)
        if i%12==11: wp()
    vwait(['u']); A('ds_write_b128 v41, v[112:115]\nds_write_b128 v41, v[116:119] offset:2048')
    while k[0]<n: A(f's_waitcnt vmcnt({TH})'); wp()
    A("""v_mov_b32 v8, v28
    v_mov_b32 v9, v29
    v_mov_b32 v10, v30
    v_mov_b32 v11, v31""")
    A(f"""s_lshl_b32 s38, s54, 12
    s_add_u32 s38, s38, {EX}
    v_add_u32 v6, s38, v3
    v_xor_b32 v7, 4096, v6
    v_lshlrev_b32 v12, 5, v8
    v_lshl_add_u32 v12, v9, 3, v12
    s_lshl_b32 s38, s49, 11
    s_add_u32 s38, s38, s47
    v_add_u32 v12, s38, v12
    v_lshrrev_b32 v13, 2, v8
    v_mul_u32_u24 v13, {448*128}, v13
    v_and_b32 v8, 3, v8
    v_lshl_add_u32 v13, v8, 5, v13
    v_lshl_add_u32 v13, v9, 3, v13
    s_lshl_b32 s39, s53, 1
    s_add_u32 s39, s39, s48
    s_mul_i32 s44, s49, 448
    s_add_u32 s44, s44, s39
    s_lshl_b32 s44, s44, 7
    s_add_u32 s44, s44, {FS}
    s_mul_i32 s38, s49, {16*448}
    s_add_u32 s38, s38, s39
    s_lshl_b32 s38, s38, 7
    s_add_u32 s38, s38, {ST}
    v_subrev_u32 v4, 16, v14
    v_add_u32 v2, {112*1024}, v3""")
    A.st('b1'); async_(V4,0); A('v_or_b32 v5, 16, v15'); lpoll(A,V4,cw); A(f's_setprio {cp}'); A.st('a8')
    Y=16
    seq=[(g,m,b) for g in range(4) for m in range(8) for b in range(m,8)]
    need=[]; last={}
    for i,(g,m,b) in enumerate(seq):
        for f in (('A',g,m),('B',g,b-m)):
            if f not in last: need.append(f)
            last[f]=i
    pool=list(range(48,256-8*NA,4)); loc={}; iss={}; cnt=[0]; done=-1
    def rd():
        f=need.pop(0); r=pool.pop(0); loc[f]=r
        if f[0]=='A':
            o=(3-f[1])*64+(7-f[2])*512; A(f'ds_read_b64 {vr(r,2)}, v10 offset:{o}\nds_read_b64 {vr(r+2,2)}, v10 offset:{o+8}'); cnt[0]+=2
        else: A(f'ds_read_b128 {vr(r,4)}, v11 offset:{512*f[2]+64*(3-f[1])}'); cnt[0]+=1
        iss[f]=cnt[0]-1
    for _ in range(10): rd()
    for i,(g,m,b) in enumerate(seq):
        fa,fb=('A',g,m),('B',g,b-m)
        k=max(iss[fa],iss[fb])
        if k>done: A(f's_waitcnt lgkmcnt({cnt[0]-1-k})'); done=k
        A(f'v_mfma_f32_16x16x32_bf16 {vr(Y+4*b,4)}, {vr(loc[fa],4)}, {vr(loc[fb],4)}, {"0" if g==0 and m==0 else vr(Y+4*b,4)}')
        for f in (fa,fb):
            if last[f]==i: pool.append(loc[f])
        if need and pool and cnt[0]-1-done<13: rd()
    A.st('a9')
    def sepi():
        F=48
        for k in range(4): A(f'ds_read_b64 {vr(F+2*k,2)}, v12 offset:{512+512*k}')
        L=A.label('CV'); A(f's_cmp_eq_u32 s49, 0\ns_cbranch_scc1 {L}')
        for i in range(16): A(f'v_swap_b32 v{Y+i}, v{Y+16+i}')
        A(f'{L}:')
        for k in range(4): A(f'ds_write_b128 v6, {vr(Y+16+4*k,4)} offset:{k*1024}')
        async_(V5)
        for k in range(4): A(f'ds_read_b128 {vr(Y+16+4*k,4)}, v7 offset:{k*1024}')
        T=64
        for i in range(8): A(f'v_lshlrev_b32 v{T+2*i}, 16, v{F+i}\nv_and_b32 v{T+2*i+1}, 0xffff0000, v{F+i}')
        for i in range(16): A(f'v_mul_f32 v{T+i}, s46, v{T+i}')
        for i in range(8): A(f'v_cvt_pk_bf16_f32 v{F+i}, v{T+2*i}, v{T+2*i+1}')
        for i in range(8): A(f'v_lshlrev_b32 v{T+2*i}, 16, v{F+i}\nv_and_b32 v{T+2*i+1}, 0xffff0000, v{F+i}')
        async_(V6,0)
        for i in range(16): A(f'v_add_f32 v{Y+i}, v{Y+i}, v{Y+16+i}')
        for i in range(8): A(f'v_cvt_pk_bf16_f32 v{F+i}, v{Y+2*i}, v{Y+2*i+1}')
        for i in range(8): A(f'v_lshlrev_b32 v{Y+2*i}, 16, v{F+i}\nv_and_b32 v{Y+2*i+1}, 0xffff0000, v{F+i}')
        for i in range(16): A(f'v_add_f32 v{Y+i}, v{Y+i}, v{T+i}')
        for i in range(8): A(f'v_cvt_pk_bf16_f32 v{F+i}, v{Y+2*i}, v{Y+2*i+1}')
        for k in range(4): A(f's_add_u32 s39, s38, {k*4*448*128}\nbuffer_store_dwordx2 {vr(F+2*k,2)}, v13, {WS}, s39 offen sc1')
        A.st('b2')
    A(f's_setprio {sp}'); sepi()
    for x in wl: A(x)
    lpoll(A,V6)
    A(f'ds_read_b32 v1, v4\ns_waitcnt lgkmcnt(0)\nv_cmp_ne_u32 vcc, -1, v1\ns_cbranch_vccz A_J\ns_waitcnt vmcnt(0)'); A(flag(A,44,6)); lpoll(A,-1,4); A(f'A_J:\ns_setprio {a2p}'); A.st('a10')
    gemm2(A,NA,NG,WR,16,range(80,256-8*NA,8),3,2,11,fl=flag(A,44,6),pu=PA); A.st('b3')
    print('A stamps',A.names); assert A.cur<=10
    fin0(A,0)

def service(A):
    XP=960; XL=65536
    A(f'''SV:
    s_lshl_b32 s21, s21, 2
    s_add_u32 s21, s21, s22
    v_lshrrev_b32 v1, 3, v0
    v_and_b32 v2, 7, v0
    v_mul_u32_u24 v3, 896, v1
    v_lshl_add_u32 v4, v2, 4, v3
    s_lshl_b32 s23, s21, 3
    s_add_u32 s23, s23, s3
    s_mul_i32 s36, s23, {8*896}
    s_lshl_b32 s37, s3, 5
    s_add_u32 s37, s37, s21
    s_waitcnt lgkmcnt(0)
    s_load_dword s20, s[6:7], 0''')
    A.srd(24,4,XB)
    if SR:
        A.srd(8,12,WB)
        A('v_lshrrev_b32 v192, 5, v0\nv_and_b32 v193, 31, v0\nv_mul_u32_u24 v192, 3584, v192\nv_lshl_add_u32 v192, v193, 2, v192\nv_lshlrev_b32 v193, 4, v0')
        for r in (3,0,1,2):
            if r==3: A('s_cmp_ge_u32 s37, 16\ns_cbranch_scc1 SR_1')
            A(f'''s_add_u32 s48, s37, {256*r}
            s_lshr_b32 s49, s48, 4
            s_mul_i32 s49, s49, 37
            s_lshr_b32 s49, s49, 8
            s_mul_i32 s50, s49, 112
            s_sub_u32 s48, s48, s50
            s_mul_i32 s48, s48, {16*896}
            s_lshl_b32 s49, s49, 7
            s_add_u32 s48, s48, s49
            s_add_u32 s49, s48, {8*896}''')
            for e in range(8): A(f'buffer_load_dword v{128+8*r+e}, v192, s[8:11], s{48+e//4} offen offset:{896*(e&3)} nt')
            if r==3:
                A('SR_1:')
                for i in range(7): A(f'buffer_load_dwordx4 {vr(16+4*i,4)}, v4, s[24:27], s36 offen offset:{128*i}')
    else:
        for i in range(7): A(f'buffer_load_dwordx4 {vr(16+4*i,4)}, v4, s[24:27], s36 offen offset:{128*i}')
    A.srd(16,6,WSZ)
    A(f'''v_bfe_u32 v6, v0, 2, 2
    v_bfe_u32 v8, v0, 4, 1
    v_and_b32 v9, 3, v0
    v_lshl_or_b32 v8, v8, 2, v9
    v_mul_u32_u24 v8, {8*XP+16}, v8
    v_mul_u32_u24 v6, {XP}, v6
    v_add_u32 v8, v8, v6
    v_lshrrev_b32 v7, 5, v0
    v_lshl_add_u32 v8, v7, 3, v8
    s_mul_i32 s42, s3, 112
    s_add_u32 s42, s42, {XL}
    v_add_u32 v14, s42, v8
    v_mul_u32_u24 v15, {XP}, v1
    v_lshl_add_u32 v15, v2, 4, v15
    s_mul_i32 s42, s3, {8*XP+16}
    s_add_u32 s42, s42, {XL}
    v_add_u32 v15, s42, v15
    v_mov_b32 v6, 0
    v_mov_b32 v7, 0
    s_mov_b32 s42, 0x3f803f80
    s_waitcnt lgkmcnt(0)''')
    nonce(A); A.stamp(1)
    for i in range(7):
        A(f's_waitcnt vmcnt({6-i+24*SR})')
        for k in range(4): A(f'v_dot2_f32_bf16 v6, v{16+4*i+k}, s42, v6\nv_dot2_f32_bf16 v7, v{16+4*i+k}, v{16+4*i+k}, v7')
    for m in ('quad_perm:[1,0,3,2]','quad_perm:[2,3,0,1]','row_half_mirror'):
        for r in (6,7): A(f'v_add_f32_dpp v{r}, v{r}, v{r} {m} row_mask:0xf bank_mask:0xf')
    A(f'''v_mul_f32 v6, {fh(-1/448)}, v6
    v_mul_f32 v7, {fh(1/448)}, v7
    v_fma_f32 v7, -v6, v6, v7
    v_max_f32 v7, 0, v7
    v_cvt_pk_bf16_f32 v8, v6, v6
    v_and_b32 v6, 0xffff0000, v8''')
    bfr(A,7,7); A(f'v_add_f32 v7, {fh(1e-5)}, v7'); bfr(A,7,7); A('v_sqrt_f32 v7, v7'); bfr(A,10,7)
    A(f'''v_rcp_f32 v7, v10
    v_mov_b32 v11, s20
    v_mov_b32 v60, v7
    v_lshlrev_b32 v3, 4, v1
    v_mul_f32 v9, {hex(NLOG2E)}, v7
    s_lshl_b32 s42, s23, 7
    s_add_u32 s42, s42, {STAT}
    v_cmp_eq_u32 vcc, 0, v2
    s_mov_b64 exec, vcc
    buffer_store_dwordx4 v[8:11], v3, {WS}, s42 offen sc1
    s_mov_b64 exec, -1''')
    if SR:
        A(f's_mov_b32 s50, 0x05040100\ns_mov_b32 s51, 0x07060302\ns_lshl_b32 s48, s37, 11\ns_add_u32 s48, s48, {WD}\ns_waitcnt vmcnt(1)')
        for r in range(4):
            if r==3: A('s_cmp_ge_u32 s37, 16\ns_cbranch_scc1 SR_2')
            for di in range(2):
                for i in range(4): A(f'v_perm_b32 v{160+8*r+4*di+i}, v{129+8*r+2*i}, v{128+8*r+2*i}, s{50+di}')
                A(f'buffer_store_dwordx4 {vr(160+8*r+4*di,4)}, v193, {WS}, s48 offen offset:{1024*di} sc1')
            A(f's_add_u32 s48, s48, {256*2048}')
        A('SR_2:')
    A.stamp(2)
    for i in range(7):
        T=44+8*(i&1)
        for k in range(4): A(f'v_lshlrev_b32 v{T+2*k}, 16, v{16+4*i+k}\nv_and_b32 v{T+2*k+1}, 0xffff0000, v{16+4*i+k}')
        for k in range(4): A(f'v_pk_add_f32 {vr(T+2*k,2)}, {vr(T+2*k,2)}, v[6:7] op_sel_hi:[1,0]')
        for k in range(4): A(f'v_cvt_pk_bf16_f32 v{16+4*i+k}, v{T+2*k}, v{T+2*k+1}')
        for k in range(4): A(f'v_lshlrev_b32 v{T+2*k}, 16, v{16+4*i+k}\nv_and_b32 v{T+2*k+1}, 0xffff0000, v{16+4*i+k}')
        for k in range(4): A(f'v_pk_mul_f32 {vr(T+2*k,2)}, {vr(T+2*k,2)}, v[60:61] op_sel_hi:[1,0]')
        for k in range(4): A(f'v_cvt_pk_bf16_f32 v{16+4*i+k}, v{T+2*k}, v{T+2*k+1}')
        A(f'ds_write_b128 v15, {vr(16+4*i,4)} offset:{128*i}')
    A.stamp(3)
    A('s_waitcnt lgkmcnt(0)\ns_barrier'); A.stamp(4)
    for i in range(7):
        for p in range(2): A(f'ds_read_b64_tr_b16 {vr(16+4*i+2*p,2)}, v14 offset:{16*i+4*XP*p}')
    A(f'''v_and_b32 v4, 31, v0
    v_lshlrev_b32 v4, 4, v4
    v_lshrrev_b32 v5, 5, v0
    v_lshl_add_u32 v4, v5, 14, v4
    s_mul_i32 s42, s3, {14*16384}
    s_lshl_b32 s43, s21, 9
    s_add_u32 s42, s42, s43
    s_add_u32 s42, s42, {XT}
    s_lshl_b32 s46, s37, 7
    s_add_u32 s46, s46, {FX}''')
    for i in range(7): A(f's_waitcnt lgkmcnt({12-2*i})\nbuffer_store_dwordx4 {vr(16+4*i,4)}, v4, {WS}, s42 offen sc1\ns_add_u32 s42, s42, 32768')
    if SR:
        A(f'''s_lshl_b32 s48, s37, 7
        s_add_u32 s48, s48, {FW}
        s_cmp_ge_u32 s37, 16
        s_cselect_b32 s50, 7, 15
        s_mov_b32 s51, 0
        v_lshlrev_b32 v194, 15, v0
        v_mov_b32 v195, s20
        s_waitcnt vmcnt(7)
        s_mov_b64 exec, s[50:51]
        buffer_store_dword v195, v194, {WS}, s48 offen sc1
        s_mov_b64 exec, -1''')
    A(f's_waitcnt vmcnt({SR})'); A(flag(A,46,5)); A.stamp(5)
    A(f'''s_cmp_lg_u32 s21, 0
    s_cbranch_scc1 SV_3
    s_and_b32 s42, s3, 3
    v_lshl_add_u32 v4, s42, 6, v0
    v_mov_b32 v5, {FZ}
    v_mov_b32 v6, {FX-224*128}
    v_cmp_gt_u32 vcc, 224, v4
    v_cndmask_b32 v5, v6, v5, vcc
    v_lshl_add_u32 v4, v4, 7, v5''')
    poll(A,4,5)
    A('s_barrier\ns_cmp_lg_u32 s3, 0\ns_cbranch_scc1 SV_3\ns_mov_b32 s42, 0'); A(flag(A,42,5))
    A('SV_3:')
    if PF:
        A(f'''s_cmp_ge_u32 s3, 7
        s_cbranch_scc1 SV_4
        s_and_b32 s42, s21, 3
        s_mul_i32 s42, s42, 28
        s_mul_i32 s43, s3, 112
        s_add_u32 s42, s42, s43
        s_lshl_b32 s43, s42, 7
        s_add_u32 s43, s43, {FW}
        s_lshl_b32 s42, s42, 11
        s_add_u32 s42, s42, {WD}
        v_min_u32 v4, 27, v0
        v_lshl_add_u32 v4, v4, 7, s43
        v_lshlrev_b32 v6, {4 if PF>7 else 7}, v0''')
        A('v_mov_b32 v7, s43'); poll(A,7,5); poll(A,4,5); A('s_cbranch_vccnz SV_4')
        for i in range(PF):
            if PF>7: A(f'buffer_load_dwordx4 {vr(16+4*i,4)}, v6, {WS}, s42 offen\ns_add_u32 s42, s42, 1024')
            else: A(f'buffer_load_dword v{16+i}, v6, {WS}, s42 offen\ns_add_u32 s42, s42, 8192')
        A('s_waitcnt vmcnt(0)\nSV_4:')
    if PH:
        A(f'''s_mul_i32 s42, s21, 28
        s_add_u32 s42, s42, s3
        s_lshl_b32 s42, s42, 7
        s_add_u32 s42, s42, {FH}
        s_cmp_lt_u32 s3, 4
        s_cselect_b32 s43, 3, 2
        s_cselect_b32 s44, 0, 8
        v_min_u32 v4, s43, v0
        v_lshlrev_b32 v4, 10, v4
        v_add_u32 v4, s42, v4
        s_mul_i32 s42, s21, 224
        s_lshl_b32 s43, s3, 2
        s_add_u32 s42, s42, s43
        s_lshl_b32 s42, s42, 10
        s_add_u32 s42, s42, {HH}
        v_and_b32 v6, 31, v0
        v_lshlrev_b32 v6, 7, v6
        v_lshrrev_b32 v7, 5, v0
        v_mul_u32_u24 v7, {112*1024}, v7
        v_add_u32 v6, v6, v7
        s_mov_b32 s57, 0
        SV_5:
        buffer_load_dword v5, v4, {WS}, 0 offen sc1
        s_add_u32 s57, s57, 1
        s_waitcnt vmcnt(0)
        v_cmp_eq_u32 vcc, s20, v5
        s_nop 4
        s_andn2_b32 s45, vcc_lo, s44
        s_or_b32 s44, s44, vcc_lo''')
        for j in range(4):
            A(f's_bitcmp1_b32 s45, {j}\ns_cbranch_scc0 SV_6{j}\ns_add_u32 s43, s42, {j*32768}\nbuffer_load_dword v{16+j}, v6, {WS}, s43 offen\nSV_6{j}:')
        A(f's_and_b32 s45, s44, 15\ns_cmp_eq_u32 s45, 15\ns_cbranch_scc1 SV_7\ns_cmp_lt_u32 s57, {SPIN}\ns_cbranch_scc1 SV_5\nSV_7:\ns_waitcnt vmcnt(0)')
    A.dump(1,6); A('s_endpgm')

def build(prof=False, en='a2,a3,a4,g6,g12,a7,a8,a9,b2,a10', **kw):
    A=Asm(); A.prof=prof; A.en=en.split(','); n=NAME+'_kernel'; A.begin(n); A.stamp0()
    A(f"""s_cmp_ge_u32 s2, 256
    s_cbranch_scc1 KEND
    s_load_dwordx2 s[4:5], s[0:1], 0
    s_load_dwordx2 s[6:7], s[0:1], 120
    s_load_dwordx8 s[8:15], s[0:1], 80
    s_getpc_b64 s[24:25]
    PCREF:
    v_lshlrev_b32 v2, 6, v0
    v_min_u32 v2, CODEEND-PCREF-4, v2
    v_mov_b32 v3, s25
    v_add_co_u32 v2, vcc, s24, v2
    v_addc_co_u32 v3, vcc, 0, v3, vcc
    global_load_dword v127, v[2:3], off
    v_lshrrev_b32 v1, 6, v0
    v_and_b32 v0, 63, v0
    v_readfirstlane_b32 s3, v1
    s_and_b32 s21, s2, 7
    s_lshr_b32 s22, s2, 3
    s_cmp_lt_u32 s22, 4
    s_cbranch_scc1 SV
    s_load_dwordx16 s[36:51], s[0:1], 8
    s_sub_u32 s22, s22, 4
    s_mul_i32 s53, s21, 28
    s_add_u32 s53, s53, s22
    s_mul_i32 s55, s22, 37
    s_lshr_b32 s55, s55, 8
    s_mul_i32 s56, s55, 7
    s_sub_u32 s52, s22, s56
    s_lshl_b32 s23, s21, 2
    s_add_u32 s23, s23, s55
    s_and_b32 s22, s21, 1
    s_mul_i32 s22, s22, 7
    s_add_u32 s22, s22, s52
    s_lshr_b32 s21, s21, 1
    s_lshl_b32 s21, s21, 2
    s_add_u32 s21, s21, s55
    s_and_b32 s54, s3, 3""")
    dmaprep(A)
    A(f"""v_lshl_add_u32 v2, s54, 6, v0
    s_lshl_b32 s57, s53, 10
    v_lshl_add_u32 v3, v2, 2, s57
    s_lshl_b32 s57, s53, 2
    s_mov_b32 s26, {XB}
    s_mov_b32 s27, 0x20000
    s_mov_b32 s30, {WB}
    s_mov_b32 s31, 0x20000
    s_mov_b32 s34, {WB}
    s_mov_b32 s35, 0x20000
    s_mov_b32 s18, {WSZ}
    s_mov_b32 s19, 0x20000
    s_cmp_lt_u32 s3, 4
    s_waitcnt lgkmcnt(0)
    global_load_dword v{PR}, v3, s[36:37] nt
    global_load_dword v{PR+1}, v3, s[38:39] nt
    s_cbranch_scc1 P_G""")
    for i in range(2,6): A(f'global_load_dword v{PR+i}, v3, s[{36+2*i}:{37+2*i}] nt')
    A(f"""P_G:
    s_load_dword s100, s[48:49], s57
    s_load_dword s101, s[50:51], s57
    s_load_dword s20, s[6:7], 0
    s_mov_b32 s24, s4
    s_and_b32 s25, s5, 0xffff
    s_mov_b32 s28, s8
    s_and_b32 s29, s9, 0xffff
    s_mov_b32 s32, s10
    s_and_b32 s33, s11, 0xffff
    s_mov_b32 s16, s6
    s_and_b32 s17, s7, 0xffff
    s_cmp_lt_u32 s3, 4
    s_cbranch_scc1 GW""")
    kg={k:kw.pop(k) for k in ('gp','NE','xm','gs','th','gw','es','tp','g2p','gv','gm','ep','gf','st') if k in kw}
    awave(A,**kw); final(A,12); A('KEND:\ns_endpgm'); gwave(A,**kg); service(A); A('CODEEND:')
    A.end(n,256,102)
    A.launches.append(f'; @launch grid=(256,1,1) block=(512,1,1) lds={LDS}')
    A.lines,tot=haz.fix(A.lines); print('nops',tot,'lines',len(A.lines))
    return A.text()
if __name__=='__main__':
    kw={k:(int(v) if v.isdigit() else v) for k,v in (a.split('=') for a in sys.argv[2:])}
    for k in ('SR','PH','PF','HS','PRE','NR','PG','PA','NG','RR','GO','ROT','XB13'):
        if k in kw: globals()[k]=kw.pop(k)
    NA=28-NG; HS=HS.replace('+',' ').strip()
    open(sys.argv[1],'w').write(build(**kw))
```
